```python
import torch

def _softmax(x, axis=-1):
    return torch.softmax(x, dim=axis)
def _gelu(x):
    return torch.nn.functional.gelu(x, approximate="tanh")
def _silu(x):
    return torch.nn.functional.silu(x)
def _sigmoid(x):
    return torch.sigmoid(x)
def _layernorm(x, axis=-1, eps=1e-5):
    m = x.mean(dim=axis, keepdim=True)
    v = x.var(dim=axis, keepdim=True, unbiased=False)
    return (x - m) / torch.sqrt(v + eps)
def _scatter_add(tgt, idx, src, axis=0):
    return tgt.clone().index_add_(axis, idx, src)
def _segment_sum(src, seg, n):
    out = torch.zeros((n,) + src.shape[1:], dtype=src.dtype)
    return out.index_add_(0, seg, src)
def _pad(x, pw):
    flat = tuple(v for pair in reversed(pw) for v in pair)
    return torch.nn.functional.pad(x, flat)

kernel_name = 'sequential_preLN__sliding_block_cached__mixer_token_mlp__decode'

def setup_inputs():

    _w = (lambda a: (lambda t: t.to(torch.bfloat16) if t.is_floating_point() else t)(torch.as_tensor(a)))
    def _A_setup():
        B, Sq, D = 1, 1, 448
        Hq, Hkv, Sk, Dh = 16, 8, 65536, 256
        assert Hq % Hkv == 0, (Hq, Hkv)
        return {
            "x": _w((lambda *s: torch.randn(*s, dtype=torch.bfloat16) * 0.05)(B, Sq, D)),
            "k_cache": _w((lambda *s: torch.randn(*s, dtype=torch.bfloat16) * 3.2)(B, Hkv, Sk, Dh)),
            "v_cache": _w((lambda *s: torch.randn(*s, dtype=torch.bfloat16) * 0.8)(B, Hkv, Sk, Dh)),
            "wq": _w((lambda *s: torch.randn(*s, dtype=torch.bfloat16) * 3.2)(D, Hq * Dh) * (D ** -0.5)),
            "wo": _w((lambda *s: torch.randn(*s, dtype=torch.bfloat16) * 0.8)(Hq * Dh, D) * ((Hq * Dh) ** -0.5)),
        }
    _A_in = _A_setup()

    def _B_setup():
        B, S, D, F = 1, 1, 448, 1792
        return {
            "x": _w((lambda *s: torch.randn(*s, dtype=torch.bfloat16) * 0.05)(B, S, D)),
            "w1": _w((lambda *s: torch.randn(*s, dtype=torch.bfloat16) * 3.2)(S, F) * (S ** -0.5)),
            "b1": _w((lambda *s: torch.randn(*s, dtype=torch.bfloat16) * 3.2)(F) * 0.02),
            "w2": _w((lambda *s: torch.randn(*s, dtype=torch.bfloat16) * 0.4)(F, S) * (F ** -0.5)),
            "b2": _w((lambda *s: torch.randn(*s, dtype=torch.bfloat16) * 0.4)(S) * 0.02),
        }
    _B_in = _B_setup()

    return {
        "A_x": _A_in["x"],
        "A_k_cache": _A_in["k_cache"],
        "A_v_cache": _A_in["v_cache"],
        "A_wq": _A_in["wq"],
        "A_wo": _A_in["wo"],
        "B_x": _B_in["x"],
        "B_w1": _B_in["w1"],
        "B_b1": _B_in["b1"],
        "B_w2": _B_in["w2"],
        "B_b2": _B_in["b2"],
    }

def reference(A_x, A_k_cache, A_v_cache, A_wq, A_wo, B_x, B_w1, B_b1, B_w2, B_b2):
    def _A_ref(x, k_cache, v_cache, wq, wo):
        B, Sq, D = x.shape
        Hq, Dh = 16, 256
        Hkv, Sk = k_cache.shape[1], k_cache.shape[2]
        W = min(4096, max(256, Sk // 4))
        rep = Hq // Hkv
        q = (lambda x, *d: x.permute(*d))((x @ wq).reshape(B, Sq, Hq, Dh), 0, 2, 1, 3)
        k = (lambda x, n, axis: torch.repeat_interleave(x, n, dim=axis))(k_cache[:, :, Sk - W:, :], rep, axis=1)
        v = (lambda x, n, axis: torch.repeat_interleave(x, n, dim=axis))(v_cache[:, :, Sk - W:, :], rep, axis=1)
        scores = torch.einsum("bhqd,bhkd->bhqk", q, k) * (Dh ** -0.5)
        p = _softmax(scores, axis=-1)
        o = torch.einsum("bhqk,bhkd->bhqd", p, v)
        return (lambda x, *d: x.permute(*d))(o, 0, 2, 1, 3).reshape(B, Sq, Hq * Dh) @ wo

    def _B_ref(x, w1, b1, w2, b2):
        B, S, D = x.shape
        h = _layernorm(x, axis=-1)
        u = torch.einsum("bsd,sf->bdf", h, w1) + b1
        u = _gelu(u)
        y = torch.einsum("bdf,fs->bds", u, w2) + b2
        return (lambda x, *d: x.permute(*d))(y, 0, 2, 1)

    x = A_x
    h = x + _A_ref(_layernorm(x, axis=-1), A_k_cache, A_v_cache, A_wq, A_wo)
    h2 = h + _B_ref(_layernorm(h, axis=-1), B_w1, B_b1, B_w2, B_b2)
    return h2
```

```python
import re
NAME = "sequential_preLN__sliding_block_cached__mixer_token_mlp__decode"
TRANS = ("v_exp_f32", "v_log_f32", "v_rcp_f32", "v_rsq_f32", "v_sqrt_f32", "v_sin_f32", "v_cos_f32", "v_rcp_iflag_f32")
_reg = re.compile(r"(?<![\w.])(?:([vsa])\[(\d+):(\d+)\]|([vsa])(\d+)(?![\w])|(vcc|exec|m0)(?![\w]))")
def regs(tok):
    out = set()
    for m in _reg.finditer(tok):
        if m.group(1): out |= {(m.group(1), i) for i in range(int(m.group(2)), int(m.group(3)) + 1)}
        elif m.group(4): out.add((m.group(4), int(m.group(5))))
        else: out.add((m.group(6), 0))
    return out
def split_ops(s):
    ops, depth, cur = [], 0, ""
    for ch in s:
        if ch == "[": depth += 1
        if ch == "]": depth -= 1
        if ch == "," and depth == 0: ops.append(cur.strip()); cur = ""
        else: cur += ch
    if cur.strip(): ops.append(cur.strip())
    return ops
class Ins:
    def __init__(self, text):
        self.text = text
        t = text.split(";")[0].strip()
        self.label = t.endswith(":") or t.startswith(".") or t == ""
        self.mn = "" if self.label else t.split()[0]
        rest = "" if self.label else t[len(self.mn):].strip()
        ops = split_ops(rest)
        mn = self.mn
        self.valu = mn.startswith("v_") and not mn.startswith("v_mfma")
        self.mfma = mn.startswith("v_mfma")
        self.trans = any(mn.startswith(x) for x in TRANS)
        self.dpp = "_dpp" in mn or "row_" in rest or "quad_perm" in rest
        self.perml = mn.startswith("v_permlane")
        self.rdl = mn.startswith("v_readlane") or mn.startswith("v_readfirstlane") or mn.startswith("v_writelane")
        self.vmem = mn.startswith("buffer_") or mn.startswith("global_")
        self.ds = mn.startswith("ds_")
        self.salu = mn.startswith("s_")
        self.dot = mn.startswith("v_dot")
        self.ldsdma = self.vmem and re.search(r"\blds\b", rest) is not None
        self.store = self.vmem and ("store" in mn or "atomic" in mn)
        self.states = 1
        if mn == "s_nop": self.states = int(ops[0], 0) + 1
        if self.label: self.states = 0
        d, u = set(), set()
        R = [regs(o) for o in ops]
        if self.valu or self.mfma:
            d |= R[0]
            for r in R[1:]: u |= r
            if self.perml: d |= R[1]; u |= R[0]
            if mn.startswith("v_cmpx"): d.add(("exec", 0))
            if mn.startswith(("v_fmac", "v_dot2c", "v_pk_fmac")) or self.dpp or mn.startswith("v_writelane"): u |= R[0]
            if mn.startswith(("v_add_co", "v_addc_co", "v_sub_co", "v_subb_co")): d |= R[1]
            if mn.startswith("v_cndmask") and len(ops) == 3: u.add(("vcc", 0))
            self.srcc = R[3] if self.mfma else set()
            self.srcab = (R[1] | R[2]) if self.mfma else set()
            self.dppsrc = R[1] if self.dpp else set()
        elif self.vmem:
            if self.store or self.ldsdma or mn.startswith(("buffer_wbl2", "buffer_inv")):
                for r in R: u |= r
                if self.ldsdma: u.add(("m0", 0))
            else:
                d |= R[0]
                for r in R[1:]: u |= r
            self.sdata = set()
            if self.store and ("x3" in mn or "x4" in mn):
                self.sdata = R[0] if mn.startswith("buffer_") else R[1]
        elif self.ds:
            if mn.startswith(("ds_read", "ds_bpermute", "ds_permute", "ds_swizzle")) or "_rtn" in mn:
                d |= R[0]
                for r in R[1:]: u |= r
            else:
                for r in R: u |= r
        elif self.salu and ops:
            if mn.startswith(("s_cmp", "s_waitcnt", "s_cbranch", "s_branch", "s_nop", "s_barrier", "s_setprio", "s_sleep", "s_bitcmp")):
                for r in R: u |= r
            else:
                d |= R[0]
                for r in R[1:]: u |= r
                if "saveexec" in mn: d.add(("exec", 0)); u.add(("exec", 0))
        self.d, self.u = d, u
def mfma_passes(mn):
    if "32x32x16" in mn or "32x32x8" in mn: return 8
    if "16x16x32" in mn or "16x16x16" in mn: return 4
    raise ValueError(mn)
def need(p, c):
    n = 0
    isS = lambda r: r[0] in ("s", "vcc")
    isV = lambda r: r[0] in ("v", "a")
    if p.valu:
        pv = {r for r in p.d if isV(r)}; ps = {r for r in p.d if isS(r)}
        if c.valu:
            if c.dpp and pv & c.dppsrc: n = max(n, 2)
            if c.perml and pv & c.u: n = max(n, 2)
            if c.rdl and not c.mn.startswith('v_writelane') and pv & c.u: n = max(n, 1)
            if ps & c.u: n = max(n, 4 if c.rdl else 2)
            if p.trans and pv & c.u: n = max(n, 1)
            if ("exec", 0) in p.d:
                if c.dpp: n = max(n, 5)
                if c.rdl or c.perml: n = max(n, 4)
                if ("exec", 0) in c.u: n = max(n, 2)
            if p.dot and pv & (c.u | c.d):
                if not (c.mn == p.mn and c.dot and not (pv & (c.u - c.d))): n = max(n, 3)
        if c.mfma:
            if pv & c.u: n = max(n, 2)
            if ("exec", 0) in p.d: n = max(n, 4)
        if c.vmem and ps & c.u: n = max(n, 5)
        if (c.vmem or c.ds) and p.dot and pv & c.u: n = max(n, 3)
        if (c.vmem or c.ds) and p.trans and pv & c.u: n = max(n, 1)
        if c.salu and (ps | ({("exec", 0)} & p.d)) & c.u: n = max(n, 1)
    if p.mfma:
        ps = mfma_passes(p.mn); tab = {4: (6, 8, 3), 8: (10, 12, 7)}[ps]
        if c.mfma:
            if p.d & c.srcab: n = max(n, tab[1])
            if p.d & c.srcc and not (p.d == c.srcc and mfma_passes(c.mn) == ps): n = max(n, tab[0])
        elif c.valu or c.vmem or c.ds:
            if p.d & (c.u | c.d): n = max(n, tab[1])
            if c.valu and p.srcc & c.d: n = max(n, tab[2])
    if p.vmem and p.store and getattr(p, "sdata", None):
        if c.valu and p.sdata & c.d: n = max(n, 2)
        elif (c.vmem or c.ds or c.mfma) and p.sdata & c.d: n = max(n, 1)
    if p.salu and ("m0", 0) in p.d and c.vmem and c.ldsdma: n = max(n, 1)
    return n
class Asm:
    def __init__(self): self.L = []
    def __call__(self, text):
        for line in text.split("\n"):
            line = line.strip()
            if line: self.L.append(line)
    def finish(self):
        out, hist = [], []
        nops = 0
        for line in self.L:
            c = Ins(line)
            if not c.label:
                dist, req = 0, 0
                for p in reversed(hist):
                    req = max(req, need(p, c) - dist)
                    dist += p.states
                    if dist > 20: break
                if req > 0:
                    nop = Ins(f"s_nop {req-1}"); out.append(nop.text + " ; hz"); hist.append(nop); nops += 1
                hist.append(c)
                if c.mn in ("s_branch", "s_endpgm"): hist = []
            out.append(line)
        self.nops = nops
        return "\n".join(("" if (l.endswith(":") or l.startswith(".")) else "    ") + l for l in out)
def wrap(body, grid, nthr, lds, nv, ns, header=""):
    return f"""{header}; @launch grid=({grid},1,1) block=({nthr},1,1) lds={lds}
.amdgcn_target "amdgcn-amd-amdhsa--gfx950"
.text
.globl {NAME}_kernel
.p2align 8
.type {NAME}_kernel,@function
{NAME}_kernel:
{body}
.section .rodata,"a"
.p2align 6
.amdhsa_kernel {NAME}_kernel
  .amdhsa_next_free_vgpr {nv}
  .amdhsa_next_free_sgpr {ns}
  .amdhsa_accum_offset {min(256, (nv+3)//4*4)}
  .amdhsa_group_segment_fixed_size 0
  .amdhsa_kernarg_size 104
  .amdhsa_user_sgpr_count 2
  .amdhsa_user_sgpr_kernarg_segment_ptr 1
  .amdhsa_system_sgpr_workgroup_id_x 1
.end_amdhsa_kernel
"""
```

```python
import sys, struct
from asmlib import Asm, wrap
def f32(x): return "0x%08x" % struct.unpack("<I", struct.pack("<f", x))[0]
KOFF, VOFF = 0, 65536
QOFF = 131072
POFF = QOFF + 1152
MOFF = POFF + 1280
LOFF = MOFF + 16
OOFF = LOFF + 256
HOFF = OOFF + 32
YOFF = HOFF + 1792
LDS = YOFF + 64
QBUF, STATS, H2B, H2A, H1 = 0x1000, 0x8000, 0x10000, 0x20000, 0x100000
CEXP = 1.4426950408889634 / 16
K0 = -2 * 1.4426950408889634 * 0.7978845608028654
K1 = K0 * 0.044715

BOUND = 20000
def gen(stamp=False, ST="sc1", LD="sc1", NT="nt", WQF="nt", dump=None):
    A = Asm()
    nst = {"S": 0, "K": 0}
    def STAMP(role):
        if not stamp: return
        k = nst[role]; nst[role] += 1
        assert k < 11
        A(f"s_memrealtime s[{80+2*k}:{81+2*k}]")
    def STAMP_FLUSH(role, lab):
        if not stamp: return
        base = 0 if role == "S" else 128
        A(f"""s_waitcnt lgkmcnt(0)
        s_lshl_b32 s34, s2, 8
        s_add_u32 s34, s34, {0x3F000000 + base}
        s_add_u32 s34, s28, s34
        s_addc_u32 s35, s29, 0
        s_mov_b64 exec, 1
        v_mov_b32 v1, 0""")
        for k in range(nst[role]):
            A(f"v_mov_b32 v2, s{80+2*k}\nv_mov_b32 v3, s{81+2*k}\nglobal_store_dwordx2 v1, v[2:3], s[34:35] offset:{8*k}\ns_nop 1")
        A("s_getreg_b32 s68, hwreg(HW_REG_XCC_ID)\nv_mov_b32 v2, s68\nv_mov_b32 v3, 0\nglobal_store_dwordx2 v1, v[2:3], s[34:35] offset:120")
    def red32(v, t, op="add"):
        A(f"v_mov_b32 {t}, {v}\nv_permlane16_swap_b32 {v}, {t}\nv_{op}_f32 {v}, {v}, {t}")
        for r in (8, 4, 2, 1):
            A(f"v_{op}_f32_dpp {v}, {v}, {v} row_ror:{r} row_mask:0xf bank_mask:0xf")
    def rnd_pair(dst_lo, dst_hi, a, b, tmp):
        A(f"v_cvt_pk_bf16_f32 {tmp}, {a}, {b}\nv_lshlrev_b32 {dst_lo}, 16, {tmp}\nv_and_b32 {dst_hi}, 0xffff0000, {tmp}")
    def ln_stats(vals, n, t, shift, smean, srinv):
        if shift:
            A(f"v_readfirstlane_b32 s72, v{vals[0]}")
            A(f"v_subrev_f32 v{t+2}, s72, v{vals[1]}\nv_mov_b32 v{t}, v{t+2}\nv_mul_f32 v{t+1}, v{t+2}, v{t+2}")
            for x in vals[2:]:
                A(f"v_subrev_f32 v{t+2}, s72, v{x}\nv_add_f32 v{t}, v{t}, v{t+2}\nv_fmac_f32 v{t+1}, v{t+2}, v{t+2}")
            A(f"v_subrev_f32 v{t+2}, s72, v{vals[0]}\nv_add_f32 v{t}, v{t}, v{t+2}\nv_fmac_f32 v{t+1}, v{t+2}, v{t+2}")
        else:
            A(f"v_add_f32 v{t}, v{vals[0]}, v{vals[1]}\nv_mul_f32 v{t+1}, v{vals[0]}, v{vals[0]}\nv_fmac_f32 v{t+1}, v{vals[1]}, v{vals[1]}")
            for x in vals[2:]:
                A(f"v_add_f32 v{t}, v{t}, v{x}\nv_fmac_f32 v{t+1}, v{x}, v{x}")
        A(f"v_permlane32_swap_b32 v{t}, v{t+1}\nv_add_f32 v{t}, v{t}, v{t+1}")
        red32(f"v{t}", f"v{t+1}")
        A(f"v_mul_f32 v{t}, {f32(1.0/n)}, v{t}")
        A(f"v_readlane_b32 s73, v{t}, 0\nv_readlane_b32 s74, v{t}, 32")
        A(f"v_mov_b32 v{t}, s73\nv_mov_b32 v{t+1}, s74\nv_fma_f32 v{t+1}, -v{t}, v{t}, v{t+1}")
        if shift: A(f"v_add_f32 v{t}, s72, v{t}")
        A(f"v_max_f32 v{t+1}, 0, v{t+1}")
        rnd_pair(f"v{t}", f"v{t+1}", f"v{t}", f"v{t+1}", f"v{t+2}")
        A(f"v_add_f32 v{t+1}, {f32(1e-5)}, v{t+1}")
        A(f"v_cvt_pk_bf16_f32 v{t+1}, v{t+1}, v{t+1}\nv_lshlrev_b32 v{t+1}, 16, v{t+1}\nv_sqrt_f32 v{t+1}, v{t+1}")
        A(f"v_cvt_pk_bf16_f32 v{t+1}, v{t+1}, v{t+1}\nv_lshlrev_b32 v{t+1}, 16, v{t+1}\nv_rcp_f32 v{t+1}, v{t+1}")
    def ln_apply_pair(a, t, out_packed=None):
        A(f"v_sub_f32 v{a}, v{a}, v{t}\nv_sub_f32 v{a+1}, v{a+1}, v{t}")
        rnd_pair(f"v{a}", f"v{a+1}", f"v{a}", f"v{a+1}", f"v{t+2}")
        A(f"v_mul_f32 v{a}, v{a}, v{t+1}\nv_mul_f32 v{a+1}, v{a+1}, v{t+1}")
        if out_packed is not None: A(f"v_cvt_pk_bf16_f32 v{out_packed}, v{a}, v{a+1}")
        else: rnd_pair(f"v{a}", f"v{a+1}", f"v{a}", f"v{a+1}", f"v{t+2}")
    def poll(label, loads, tags, mask):
        A(f"s_mov_b32 s79, 0\n{label}:")
        if mask != "-1": A(f"s_mov_b64 exec, {mask}")
        for l in loads: A(l)
        A(f"s_add_u32 s79, s79, 1\ns_cmp_gt_u32 s79, {BOUND}\ns_cbranch_scc1 {label}_x")
        A("s_waitcnt vmcnt(0)")
        for t in tags: A(f"v_cmpx_eq_u32 vcc, s33, v{t}")
        A(f"s_cmp_eq_u64 exec, {mask}\ns_mov_b64 exec, -1\ns_cbranch_scc0 {label}\n{label}_x:\ns_mov_b64 exec, -1")

    STAMP("S"); nst["K"] = nst["S"]
    A("""v_lshrrev_b32 v2, 6, v0
    s_cmp_ge_u32 s2, 256
    s_cbranch_scc1 L_end
    s_load_dwordx16 s[4:19], s[0:1], 0
    s_load_dwordx8 s[20:27], s[0:1], 64
    s_load_dwordx2 s[28:29], s[0:1], 96
    v_readfirstlane_b32 s32, v2
    v_and_b32 v1, 63, v0
    s_and_b32 s30, s2, 7
    s_lshr_b32 s31, s2, 3
    s_cmp_eq_u32 s32, 0
    s_cbranch_scc1 L_svc""")
    A("""s_sub_u32 s32, s32, 1
    v_lshrrev_b32 v2, 5, v1
    v_lshl_add_u32 v2, s32, 1, v2
    v_and_b32 v3, 31, v1                   ; pos
    v_xor_b32 v4, v3, v2
    v_lshlrev_b32 v4, 4, v4
    v_lshl_add_u32 v4, v2, 9, v4
    v_and_b32 v5, 7, v2
    v_lshlrev_b32 v5, 1, v5
    v_xor_b32 v5, v3, v5
    v_lshlrev_b32 v5, 4, v5
    v_lshl_add_u32 v5, v2, 9, v5
    s_lshl_b32 s34, s30, 25
    s_lshl_b32 s35, s31, 16
    s_add_u32 s34, s34, s35
    s_add_u32 s34, s34, 0x1E00000
    s_lshl_b32 m0, s32, 10
    s_mov_b32 s38, 0x10000
    s_mov_b32 s39, 0x20000
    s_mov_b32 s42, 0x10000
    s_mov_b32 s43, 0x20000
    s_mov_b32 s35, 0
    s_waitcnt lgkmcnt(0)
    s_load_dword s33, s[28:29], 0
    s_add_u32 s36, s6, s34
    s_addc_u32 s37, s7, 0
    s_add_u32 s40, s8, s34
    s_addc_u32 s41, s9, 0""")
    A(f"""s_barrier
    L_kl:
    buffer_load_dwordx4 v4, s[36:39], s35 offen {NT} lds
    s_add_u32 s35, s35, 0x2000
    s_add_u32 m0, m0, 0x2000
    s_cmp_lt_u32 s35, 0x10000
    s_cbranch_scc1 L_kl
    s_mov_b32 s35, 0
    L_vl:
    buffer_load_dwordx4 v5, s[40:43], s35 offen {NT} lds
    s_add_u32 s35, s35, 0x2000
    s_add_u32 m0, m0, 0x2000
    s_cmp_lt_u32 s35, 0x10000
    s_cbranch_scc1 L_vl""")
    STAMP("K")
    A(f"""v_and_b32 v2, 15, v1                   ; r
    v_lshrrev_b32 v3, 4, v1                ; c
    s_lshl_b32 s34, s32, 13
    v_xor_b32 v6, v3, v2
    v_lshlrev_b32 v6, 4, v6
    v_lshl_add_u32 v6, v2, 9, v6
    v_add_u32 v6, s34, v6
    v_xor_b32 v7, 64, v6
    v_xor_b32 v8, 0x80, v6
    v_xor_b32 v9, 0xc0, v6
    v_and_b32 v4, 1, v2                    ; head
    v_mul_u32_u24 v10, 576, v4
    v_lshl_add_u32 v10, v3, 4, v10
    v_add_u32 v10, {QOFF}, v10
    v_lshlrev_b32 v11, 2, v4
    v_add_u32 v11, {MOFF}, v11
    s_lshl_b32 s34, s32, 4
    s_add_u32 s34, s34, {LOFF}
    v_lshlrev_b32 v12, 7, v4
    v_lshl_add_u32 v12, v3, 2, v12
    v_add_u32 v12, s34, v12
    v_and_b32 v4, 3, v2
    v_mul_u32_u24 v13, 320, v4
    v_lshl_add_u32 v13, v3, 4, v13
    v_add_u32 v13, {POFF}, v13
    s_lshr_b32 s34, s32, 1
    s_lshl_b32 s34, s34, 6
    s_and_b32 s35, s32, 1
    s_lshl_b32 s35, s35, 3
    s_add_u32 s34, s34, s35
    v_add_u32 v14, s34, v13
    v_lshrrev_b32 v4, 2, v1
    v_and_b32 v5, 7, v4
    v_lshlrev_b32 v5, 1, v5
    v_bfe_u32 v15, v1, 1, 1                ; cc>>1
    v_lshl_add_u32 v15, s32, 2, v15
    v_xor_b32 v15, v15, v5
    v_lshlrev_b32 v15, 4, v15
    v_lshl_add_u32 v15, v4, 9, v15
    v_and_b32 v5, 1, v1
    v_lshl_add_u32 v15, v5, 3, v15
    v_add_u32 v15, {VOFF}, v15
    v_xor_b32 v16, 32, v15                 ; ct1
    v_and_b32 v4, 1, v3
    v_lshlrev_b32 v4, 4, v4
    v_lshrrev_b32 v5, 1, v3
    v_add_u32 v4, v4, v5
    v_lshl_add_u32 v4, s32, 1, v4          ; consumer s'
    v_lshlrev_b32 v17, 12, v4
    v_lshl_add_u32 v17, v2, 3, v17
    s_lshl_b32 s34, s30, 17
    s_lshl_b32 s35, s31, 7
    s_add_u32 s34, s34, s35
    s_add_u32 s34, s34, {H1}
    s_add_u32 s64, s28, s34
    s_addc_u32 s65, s29, 0
    s_mul_i32 s34, s30, {32*3584}
    s_mul_i32 s35, s31, 112
    s_add_u32 s34, s34, s35
    s_add_u32 s34, s34, {H2A}
    s_add_u32 s66, s28, s34
    s_addc_u32 s67, s29, 0
    v_and_b32 v4, 7, v1                    ; ch
    v_lshrrev_b32 v5, 3, v1                ; rp
    s_mul_i32 s34, s32, 112
    v_mul_u32_u24 v18, 1792, v5
    v_lshl_add_u32 v18, v4, 4, v18
    v_add_u32 v18, s34, v18
    v_cmp_eq_u32 vcc, 7, v4
    v_mov_b32 v19, 0x7ffffff
    v_cndmask_b32 v18, v18, v19, vcc
    v_lshlrev_b32 v19, 2, v5
    v_add_u32 v19, {OOFF}, v19
    s_mul_i32 s34, s32, 28
    v_lshrrev_b32 v5, 5, v1
    v_lshlrev_b32 v5, 1, v5
    v_lshl_add_u32 v5, v4, 2, v5
    v_bfe_u32 v4, v1, 4, 1
    v_add3_u32 v5, v5, v4, s34             ; pair
    v_mul_u32_u24 v4, 9363, v5
    v_lshrrev_b32 v4, 16, v4               ; s' = pair/7
    v_mul_u32_u24 v20, 7, v4
    v_sub_u32 v20, v5, v20
    v_lshlrev_b32 v20, 4, v20
    v_mul_u32_u24 v4, 3584, v4
    v_add_u32 v20, v20, v4
    s_lshl_b32 s34, s30, 9
    s_lshl_b32 s35, s31, 4
    s_add_u32 s34, s34, s35
    s_mul_i32 s34, s34, 896
    s_add_u32 s44, s12, s34
    s_addc_u32 s45, s13, 0
    s_mov_b32 s46, 14336
    s_mov_b32 s47, 0x20000
    s_mov_b32 s48, s16
    s_mov_b32 s49, s17
    s_mov_b32 s50, 3584
    s_mov_b32 s51, 0x20000
    s_mov_b32 s52, s18
    s_mov_b32 s53, s19
    s_mov_b32 s54, 3584
    s_mov_b32 s55, 0x20000
    s_mov_b32 s56, s20
    s_mov_b32 s57, s21
    s_mov_b32 s58, 3584
    s_mov_b32 s59, 0x20000
    s_add_u32 s60, s28, {H2B}
    s_addc_u32 s61, s29, 0
    s_mov_b32 s62, 0x8000
    s_mov_b32 s63, 0x20000
    s_mov_b32 s68, 0x00030003
    s_mov_b32 s69, 0x00030003
    s_mov_b32 s70, 0x000f000f
    s_mov_b32 s71, 0x000f000f
    s_mov_b32 s76, 0xcccccccc
    s_mov_b32 s77, 0xcccccccc
    s_mov_b32 s78, {f32(CEXP)}
    v_subrev_u32 v0, 64, v0                ; kt
    s_waitcnt vmcnt(8) lgkmcnt(0)
    s_mul_i32 s33, s33, 0x9E3779B1
    s_add_u32 s33, s33, 0x7F4A7C15""")
    STAMP("K")
    A("s_barrier")
    STAMP("K")
    for j in range(8):
        A(f"ds_read_b128 v[{24+4*j}:{27+4*j}], v{6+(j&3)} offset:{256*(j>>2)}")
        A(f"ds_read_b128 v[{56+4*j}:{59+4*j}], v10 offset:{64*j}")
    if stamp: A("s_waitcnt lgkmcnt(0)")
    for j in range(8):
        A(f"s_waitcnt lgkmcnt({14-2*j})")
        A(f"v_mfma_f32_16x16x32_bf16 v[88:91], v[{24+4*j}:{27+4*j}], v[{56+4*j}:{59+4*j}], {'0' if j == 0 else 'v[88:91]'}")
    rnd_pair("v88", "v89", "v88", "v89", "v24")
    rnd_pair("v90", "v91", "v90", "v91", "v25")
    A(f"""v_max3_f32 v24, v88, v89, v90
    v_max_f32 v24, v24, v91
    s_mov_b64 exec, s[68:69]
    ds_max_f32 v11, v24
    s_mov_b64 exec, -1
    s_waitcnt lgkmcnt(0)
    s_barrier                              ; B3
    ds_read_b32 v24, v11
    s_waitcnt lgkmcnt(0)""")
    for i in range(4): A(f"v_sub_f32 v{88+i}, v{88+i}, v24")
    for i in range(4): A(f"v_mul_f32 v{88+i}, s78, v{88+i}")
    for i in range(4): A(f"v_exp_f32 v{88+i}, v{88+i}")
    A("v_add_f32 v24, v88, v89\nv_add_f32 v25, v90, v91\nv_add_f32 v24, v24, v25")
    rnd_pair("v26", "v27", "v88", "v89", "v30")
    rnd_pair("v28", "v29", "v90", "v91", "v31")
    for i in range(4): A(f"v_sub_f32 v{26+i}, v{88+i}, v{26+i}")
    for i in range(4): A(f"v_cndmask_b32 v{26+i}, v{88+i}, v{26+i}, s[76:77]")
    A(f"""v_cvt_pk_bf16_f32 v26, v26, v27
    v_cvt_pk_bf16_f32 v27, v28, v29
    s_mov_b64 exec, s[70:71]
    ds_write_b64 v14, v[26:27]
    s_mov_b64 exec, s[68:69]
    ds_write_b32 v12, v24
    s_mov_b64 exec, -1
    s_waitcnt lgkmcnt(0)
    s_barrier                              ; B3b""")
    STAMP("K")
    A(f"""v_lshlrev_b32 v2, 3, v0
    v_lshlrev_b32 v3, 1, v0
    s_mov_b32 s6, 896
    s_mov_b32 s7, 0x20000
    buffer_load_dwordx4 v[56:59], v18, s[44:47], 0 offen {NT}
    buffer_load_dwordx4 v[60:63], v18, s[44:47], 0 offen offset:896 {NT}
    buffer_load_dwordx2 v[64:65], v2, s[48:51], 0 offen
    buffer_load_dwordx2 v[66:67], v2, s[52:55], 0 offen
    buffer_load_dwordx2 v[68:69], v2, s[56:59], 0 offen
    buffer_load_ushort v70, v3, s[4:7], 0 offen
    v_mov_b32 v21, 0
    global_load_ushort v71, v21, s[22:23]""")
    for t in range(4): A(f"ds_read_b128 v[{72+4*t}:{75+4*t}], v13 offset:{64*t}")
    A("""v_mov_b32 v93, s33
    v_mov_b32 v95, s33
    s_mov_b32 s68, 0x55555555
    s_mov_b32 s69, 0x55555555
    s_mov_b32 s70, 0x007f007f
    s_mov_b32 s71, 0x007f007f
    s_mov_b32 s72, 0x05040100
    s_mov_b32 s73, 0x07060302
    s_waitcnt vmcnt(7) lgkmcnt(0)""")
    STAMP("K")
    A("s_barrier")
    STAMP("K")
    for t in range(4):
        for ct in range(2):
            for u in range(2):
                r = 24 + 8*t + 4*ct + 2*u
                A(f"ds_read_b64_tr_b16 v[{r}:{r+1}], v{15+ct} offset:{16384*t + 8192*u}")
    if stamp: A("s_waitcnt lgkmcnt(0)")
    for t in range(4):
        for ct in range(2):
            r = 24 + 8*t + 4*ct
            A(f"s_waitcnt lgkmcnt({14 - 4*t - 2*ct})")
            acc = f"v[{88+0}:{91}]" if ct == 0 else "v[8:11]"
            A(f"v_mfma_f32_16x16x32_bf16 {acc}, v[{72+4*t}:{75+4*t}], v[{r}:{r+3}], {'0' if t == 0 else acc}")
    A(f"""v_add_f32_dpp v92, v88, v90 quad_perm:[0,1,2,3] row_mask:0x1 bank_mask:0xf
    v_add_f32_dpp v92, v89, v91 quad_perm:[0,1,2,3] row_mask:0x2 bank_mask:0xf
    v_add_f32_dpp v92, v8, v10 quad_perm:[0,1,2,3] row_mask:0x4 bank_mask:0xf
    v_add_f32_dpp v92, v9, v11 quad_perm:[0,1,2,3] row_mask:0x8 bank_mask:0xf
    v_mov_b32_dpp v94, v92 quad_perm:[1,1,3,3] row_mask:0xf bank_mask:0xf
    s_mov_b64 exec, s[68:69]
    global_store_dwordx4 v17, v[92:95], s[64:65] {ST}
    s_mov_b64 exec, -1
    s_waitcnt vmcnt(6)""")
    for k in range(4):
        A(f"v_perm_b32 v{24+2*k}, v{60+k}, v{56+k}, s72\nv_perm_b32 v{25+2*k}, v{60+k}, v{56+k}, s73")
    A("s_waitcnt vmcnt(1)")
    A("""v_lshlrev_b32 v40, 16, v64
    v_and_b32 v41, 0xffff0000, v64
    v_lshlrev_b32 v42, 16, v65
    v_and_b32 v43, 0xffff0000, v65
    v_lshlrev_b32 v44, 16, v66
    v_and_b32 v45, 0xffff0000, v66
    v_lshlrev_b32 v46, 16, v67
    v_and_b32 v47, 0xffff0000, v67
    v_lshlrev_b32 v70, 16, v70
    v_lshlrev_b32 v71, 16, v71""")
    for i in range(1, 8): A(f"s_mov_b32 s{8+i}, {4096*i}")
    A(f"""v_mov_b32 v48, {f32(K0)}
    v_mov_b32 v49, {f32(K0)}
    v_mov_b32 v50, 1.0
    v_mov_b32 v51, 1.0
    s_mov_b32 s16, {f32(K1)}
    s_mov_b32 s17, {f32(K1)}
    v_lshlrev_b32 v3, 2, v0
    v_add_u32 v3, {HOFF}, v3
    v_lshlrev_b32 v4, 2, v1
    v_add_u32 v4, {HOFF}, v4
    s_lshl_b32 s34, s2, 3
    s_add_u32 s34, s34, {HOFF}
    v_mov_b32 v5, s34
    v_lshrrev_b32 v6, 5, v1
    s_lshl_b32 s34, s32, 2
    s_add_u32 s34, s34, {YOFF}
    v_lshlrev_b32 v7, 5, v6
    v_add_u32 v12, s34, v7
    v_add_u32 v13, {YOFF}, v7
    s_lshl_b32 s34, s2, 2
    v_lshl_add_u32 v14, v6, 1, s34""")
    STAMP("K")
    A("s_barrier")
    A("ds_read_b32 v32, v19\ns_waitcnt lgkmcnt(0)")
    for k in range(8): A(f"v_dot2_f32_bf16 v{24+k}, v{24+k}, v32, 0")
    for k in range(4): A(f"v_permlane32_swap_b32 v{24+k}, v{28+k}")
    for k in range(4): A(f"v_add_f32 v{24+k}, v{24+k}, v{28+k}")
    for k in range(2): A(f"v_permlane16_swap_b32 v{24+k}, v{26+k}")
    A(f"""v_add_f32 v92, v24, v26
    v_add_f32 v94, v25, v27
    v_add_f32_dpp v92, v92, v92 row_ror:8 row_mask:0xf bank_mask:0xf
    v_add_f32_dpp v94, v94, v94 row_ror:8 row_mask:0xf bank_mask:0xf
    s_mov_b64 exec, s[70:71]
    global_store_dwordx4 v20, v[92:95], s[66:67] {ST}
    s_mov_b64 exec, -1""")
    STAMP("K")
    A("""s_cmp_ge_u32 s2, 224
    s_cbranch_scc1 L_kend
    s_cmp_eq_u32 s32, 7
    s_cbranch_scc1 L_kend""")
    loads = [f"buffer_load_dwordx2 v[{24+2*i}:{25+2*i}], v2, s[60:63], {'0' if i == 0 else 's%d' % (8+i)} offen {LD}" for i in range(8)]
    poll("L_p2b", loads, [25+2*i for i in range(8)], "-1")
    A("""v_add_f32 v24, v24, v26
    v_add_f32 v28, v28, v30
    v_add_f32 v32, v32, v34
    v_add_f32 v36, v36, v38
    v_add_f32 v24, v24, v28
    v_add_f32 v32, v32, v36
    v_add_f32 v24, v24, v32
    v_cvt_pk_bf16_f32 v24, v24, v24
    v_lshlrev_b32 v24, 16, v24
    v_add_f32 v24, v24, v70
    v_cvt_pk_bf16_f32 v24, v24, v24
    v_lshlrev_b32 v24, 16, v24
    ds_write_b32 v3, v24
    s_waitcnt lgkmcnt(0)""")
    STAMP("K")
    A("""s_barrier
    ds_read2st64_b32 v[24:25], v4 offset0:0 offset1:1
    ds_read2st64_b32 v[26:27], v4 offset0:2 offset1:3
    ds_read2st64_b32 v[28:29], v4 offset0:4 offset1:5
    ds_read_b32 v30, v4 offset:1536
    ds_read_b64 v[32:33], v5
    s_cmp_lg_u32 s2, 0
    s_cbranch_scc1 L_noep
    s_cmp_lg_u32 s32, 0
    s_cbranch_scc1 L_noep
    s_mov_b64 exec, 1
    global_store_dword v21, v93, s[28:29]
    s_mov_b64 exec, -1
    L_noep:
    s_waitcnt lgkmcnt(0)
    v_mov_b32 v34, v32
    v_mov_b32 v35, v33""")
    ln_stats([24, 25, 26, 27, 28, 29, 30], 448, 36, True, None, None)
    for a in (24, 26, 28, 30, 32): ln_apply_pair(a, 36)
    ln_stats([24, 25, 26, 27, 28, 29, 30], 448, 36, False, None, None)
    ln_apply_pair(32, 36)
    sel = ["op_sel:[0,0] op_sel_hi:[1,0]", "op_sel:[0,1] op_sel_hi:[1,1]"]
    items = [(c, p) for c in range(2) for p in range(2)]
    U = lambda c, p: 72 + 4*c + 2*p
    Z = lambda c, p: 80 + 4*c + 2*p
    for c, p in items: A(f"v_pk_mul_f32 v[{U(c,p)}:{U(c,p)+1}], v[{40+2*p}:{41+2*p}], v[32:33] {sel[c]}")
    for c, p in items: A(f"v_cvt_pk_bf16_f32 v{Z(c,p)}, v{U(c,p)}, v{U(c,p)+1}")
    for c, p in items: A(f"v_lshlrev_b32 v{U(c,p)}, 16, v{Z(c,p)}\nv_and_b32 v{U(c,p)+1}, 0xffff0000, v{Z(c,p)}")
    for c, p in items: A(f"v_pk_add_f32 v[{U(c,p)}:{U(c,p)+1}], v[{U(c,p)}:{U(c,p)+1}], v[{44+2*p}:{45+2*p}]")
    for c, p in items: A(f"v_cvt_pk_bf16_f32 v{Z(c,p)}, v{U(c,p)}, v{U(c,p)+1}")
    for c, p in items: A(f"v_lshlrev_b32 v{U(c,p)}, 16, v{Z(c,p)}\nv_and_b32 v{U(c,p)+1}, 0xffff0000, v{Z(c,p)}")
    for c, p in items: A(f"v_pk_mul_f32 v[{Z(c,p)}:{Z(c,p)+1}], v[{U(c,p)}:{U(c,p)+1}], v[{U(c,p)}:{U(c,p)+1}]")
    for c, p in items: A(f"v_pk_fma_f32 v[{Z(c,p)}:{Z(c,p)+1}], v[{Z(c,p)}:{Z(c,p)+1}], s[16:17], v[48:49]")
    for c, p in items: A(f"v_pk_mul_f32 v[{Z(c,p)}:{Z(c,p)+1}], v[{Z(c,p)}:{Z(c,p)+1}], v[{U(c,p)}:{U(c,p)+1}]")
    for c, p in items: A(f"v_exp_f32 v{Z(c,p)}, v{Z(c,p)}\nv_exp_f32 v{Z(c,p)+1}, v{Z(c,p)+1}")
    for c, p in items: A(f"v_pk_add_f32 v[{Z(c,p)}:{Z(c,p)+1}], v[{Z(c,p)}:{Z(c,p)+1}], v[50:51]")
    for c, p in items: A(f"v_rcp_f32 v{Z(c,p)}, v{Z(c,p)}\nv_rcp_f32 v{Z(c,p)+1}, v{Z(c,p)+1}")
    for c, p in items: A(f"v_pk_mul_f32 v[{Z(c,p)}:{Z(c,p)+1}], v[{Z(c,p)}:{Z(c,p)+1}], v[{U(c,p)}:{U(c,p)+1}]")
    for c, p in items: A(f"v_cvt_pk_bf16_f32 v{Z(c,p)}, v{Z(c,p)}, v{Z(c,p)+1}")
    for c in range(2): A(f"v_dot2_f32_bf16 v{24+c}, v{Z(c,0)}, v68, 0")
    for c in range(2): A(f"v_dot2_f32_bf16 v{24+c}, v{Z(c,1)}, v69, v{24+c}")
    A("v_permlane32_swap_b32 v24, v25\nv_add_f32 v24, v24, v25")
    red32("v24", "v25")
    A("""s_mov_b32 s68, 1
    s_mov_b32 s69, 1
    s_mov_b64 exec, s[68:69]
    ds_write_b32 v12, v24
    s_waitcnt lgkmcnt(0)
    s_barrier                              ; B7
    s_cmp_lg_u32 s32, 0
    s_cbranch_scc1 L_kend
    ds_read_b128 v[24:27], v13
    ds_read_b96 v[28:30], v13 offset:16
    v_cmp_lt_u32 vcc, 31, v1
    v_cndmask_b32 v34, v34, v35, vcc
    s_waitcnt lgkmcnt(0)
    v_add_f32 v24, v24, v25
    v_add_f32 v26, v26, v27
    v_add_f32 v28, v28, v29
    v_add_f32 v24, v24, v26
    v_add_f32 v28, v28, v30
    v_add_f32 v24, v24, v28
    v_cvt_pk_bf16_f32 v24, v24, v24
    v_lshlrev_b32 v24, 16, v24
    v_add_f32 v24, v24, v71
    v_cvt_pk_bf16_f32 v24, v24, v24
    v_lshlrev_b32 v24, 16, v24
    v_add_f32 v24, v24, v34
    v_cvt_pk_bf16_f32 v24, v24, v24
    global_store_short v14, v24, s[24:25]""")
    STAMP("K")
    A("L_kend:")
    if stamp:
        A("s_cmp_lg_u32 s32, 0\ns_cbranch_scc1 L_end")
        STAMP_FLUSH("K", "k")
    A("L_end:\ns_endpgm")

    A(f"""L_svc:
    s_getpc_b64 s[34:35]
    L_pc:
    s_sub_u32 s34, s34, L_pc-{'sequential_preLN__sliding_block_cached__mixer_token_mlp__decode_kernel'}
    s_subb_u32 s35, s35, 0
    v_lshlrev_b32 v2, 6, v1
    v_add_u32 v3, 0x1000, v2
    v_min_u32 v3, L_codeend-4-sequential_preLN__sliding_block_cached__mixer_token_mlp__decode_kernel, v3
    global_load_dword v4, v2, s[34:35]
    global_load_dword v4, v3, s[34:35]
    v_add_u32 v3, 0x2000, v2
    v_min_u32 v3, L_codeend-4-sequential_preLN__sliding_block_cached__mixer_token_mlp__decode_kernel, v3
    global_load_dword v4, v3, s[34:35]
    v_lshrrev_b32 v2, 1, v1                ; rr
    v_and_b32 v3, 1, v1                    ; hf
    v_mul_u32_u24 v5, 28, v2               ; x off
    v_mul_u32_u24 v6, {14*8192}, v2
    v_lshl_add_u32 v6, v3, 4, v6
    s_lshl_b32 s34, s30, 10
    s_lshl_b32 s35, s31, 5
    s_add_u32 s34, s34, s35
    s_mov_b32 s38, {447*8192+32}
    s_mov_b32 s39, 0x20000
    s_mov_b32 s72, 0x2000
    s_waitcnt lgkmcnt(0)
    s_load_dword s33, s[28:29], 0
    global_load_dwordx4 v[8:11], v5, s[4:5]
    global_load_dwordx3 v[12:14], v5, s[4:5] offset:16
    s_add_u32 s36, s10, s34
    s_addc_u32 s37, s11, 0""")
    for j in range(14):
        A(f"buffer_load_dwordx4 v[{32+4*j}:{35+4*j}], v6, s[36:39], {'0' if j == 0 else 's72'} offen {WQF}")
        if 0 < j < 13: A("s_add_u32 s72, s72, 0x2000")
    STAMP("S")
    A(f"""s_barrier                              ; B1
    s_mov_b64 exec, 3
    v_lshlrev_b32 v7, 2, v1
    v_add_u32 v7, {MOFF}, v7
    v_mov_b32 v15, 0xff800000
    ds_write_b32 v7, v15
    s_mov_b64 exec, 1
    v_mov_b32 v7, 0
    global_load_dword v4, v7, s[12:13]
    global_load_dword v4, v7, s[16:17]
    global_load_dword v4, v7, s[18:19]
    global_load_dword v4, v7, s[20:21]
    global_load_ushort v4, v7, s[22:23]
    global_load_dword v4, v7, s[24:25]
    global_load_dword v4, v7, s[28:29] offset:64
    s_mov_b64 exec, -1
    s_lshl_b32 s34, s30, 11
    s_add_u32 s34, s34, {QBUF}
    s_add_u32 s40, s28, s34
    s_addc_u32 s41, s29, 0
    s_lshl_b32 s34, s30, 5
    s_add_u32 s34, s34, s31
    s_lshl_b32 s35, s34, 12
    s_add_u32 s35, s35, {H1}
    s_add_u32 s42, s28, s35
    s_addc_u32 s43, s29, 0                 ; H1 inbox
    s_mul_i32 s35, s34, 3584
    s_add_u32 s35, s35, {H2A}
    s_add_u32 s48, s28, s35
    s_addc_u32 s49, s29, 0                 ; H2A inbox
    s_lshl_b32 s34, s30, 10
    s_add_u32 s34, s34, {STATS}
    s_add_u32 s46, s28, s34
    s_addc_u32 s47, s29, 0
    s_lshr_b32 s34, s31, 4
    s_lshl_b32 s34, s34, 9
    s_add_u32 s44, s46, s34
    s_addc_u32 s45, s47, 0
    s_lshl_b32 s34, s30, 12
    s_mul_i32 s35, s31, 112
    s_add_u32 s34, s34, s35
    s_add_u32 s34, s34, {H2B}
    s_add_u32 s50, s28, s34
    s_addc_u32 s51, s29, 0                 ; H2B out
    s_mov_b32 s76, 0x05040100
    s_mov_b32 s77, 0x07060302
    s_mov_b32 s78, {f32(CEXP)}
    s_waitcnt vmcnt(21) lgkmcnt(0)
    s_mul_i32 s33, s33, 0x9E3779B1
    s_add_u32 s33, s33, 0x7F4A7C15""")
    STAMP("S")
    for i in range(7): A(f"v_lshlrev_b32 v{16+2*i}, 16, v{8+i}\nv_and_b32 v{17+2*i}, 0xffff0000, v{8+i}")
    ln_stats(list(range(16, 30)), 896, 88, True, None, None)
    for i in range(7): ln_apply_pair(16+2*i, 88, out_packed=8+i)
    for i in range(7):
        A(f"s_waitcnt vmcnt({7+12-2*i})")
        a, b = 32+8*i, 36+8*i
        for k in range(4):
            A(f"v_perm_b32 v{88+2*k}, v{b+k}, v{a+k}, s76\nv_perm_b32 v{89+2*k}, v{b+k}, v{a+k}, s77")
        for k in range(8):
            A(f"v_dot2_f32_bf16 v{16+k}, v{88+k}, v{8+i}, {'0' if i == 0 else 'v%d' % (16+k)}")
    STAMP("S")
    for k in range(4): A(f"v_permlane32_swap_b32 v{16+k}, v{20+k}")
    for k in range(4): A(f"v_add_f32 v{16+k}, v{16+k}, v{20+k}")
    for k in range(2): A(f"v_permlane16_swap_b32 v{16+k}, v{18+k}")
    for k in range(2): A(f"v_add_f32 v{16+k}, v{16+k}, v{18+k}")
    for r in (8, 4, 2):
        for k in range(2): A(f"v_add_f32_dpp v{16+k}, v{16+k}, v{16+k} row_ror:{r} row_mask:0xf bank_mask:0xf")
    A(f"""v_lshrrev_b32 v2, 4, v1
    v_lshl_add_u32 v2, v3, 2, v2
    s_lshl_b32 s34, s31, 6
    v_lshl_add_u32 v2, v2, 3, s34
    v_cvt_pk_bf16_f32 v16, v16, v17
    v_mov_b32 v17, s33
    s_mov_b32 s68, 0x00030003
    s_mov_b32 s69, 0x00030003
    s_mov_b64 exec, s[68:69]
    global_store_dwordx2 v2, v[16:17], s[40:41] {ST}
    s_mov_b64 exec, -1
    v_lshlrev_b32 v5, 4, v1                ; l*16
    v_lshlrev_b32 v6, 3, v1
    v_add_u32 v6, {QOFF}, v6""")
    STAMP("S")
    poll("L_pq", [f"global_load_dwordx4 v[16:19], v5, s[40:41] {LD}", f"global_load_dwordx4 v[20:23], v5, s[40:41] offset:1024 {LD}"], [17, 19, 21, 23], "-1")
    A(f"""ds_write2_b32 v6, v16, v18 offset0:0 offset1:1
    ds_write2_b32 v6, v20, v22 offset0:144 offset1:145
    s_waitcnt lgkmcnt(0)""")
    STAMP("S")
    A(f"""s_barrier                              ; B2
    v_lshlrev_b32 v6, 2, v1
    v_add_u32 v6, {LOFF}, v6
    v_lshrrev_b32 v7, 5, v1                ; half
    v_lshlrev_b32 v8, 2, v7
    v_add_u32 v8, {MOFF}, v8
    s_lshl_b32 s34, s31, 4
    v_lshl_add_u32 v9, v7, 9, s34
    v_lshrrev_b32 v10, 3, v1               ; pp
    v_and_b32 v11, 7, v1                   ; cp
    v_mul_u32_u24 v12, 112, v10
    v_lshl_add_u32 v12, v11, 4, v12
    v_lshlrev_b32 v10, 4, v10
    v_lshlrev_b32 v13, 2, v11
    v_lshl_add_u32 v13, v7, 1, v13
    v_add_u32 v13, {OOFF}, v13
    v_lshlrev_b32 v14, 4, v11
    v_lshl_add_u32 v14, v7, 3, v14
    v_mov_b32 v17, s33
    v_mov_b32 v19, s33
    s_mov_b32 s68, 1
    s_mov_b32 s69, 1
    s_mov_b32 s70, 0xff
    s_mov_b32 s71, 0xff
    s_mov_b32 s74, 0x7f7f7f7f
    s_mov_b32 s75, 0x7f7f7f7f
    s_mov_b32 s72, 0x7f
    s_mov_b32 s73, 0x7f
    s_barrier                              ; B3
    s_barrier                              ; B3b
    ds_read_b32 v18, v6
    ds_read_b32 v16, v8
    s_waitcnt lgkmcnt(0)""")
    red32("v18", "v20")
    A(f"""s_mov_b64 exec, s[68:69]
    global_store_dwordx4 v9, v[16:19], s[46:47] {ST}
    s_mov_b64 exec, -1
    s_barrier                              ; B4""")
    STAMP("S")
    poll("L_ps", [f"global_load_dwordx4 v[{24+4*i}:{27+4*i}], v10, s[44:45] offset:{128*i} {LD}" for i in range(4)],
         [25, 27, 29, 31, 33, 35, 37, 39], "-1")
    A("""v_max3_f32 v20, v24, v28, v32
    v_max_f32 v20, v20, v36
    v_max_f32_dpp v20, v20, v20 row_ror:8 row_mask:0xf bank_mask:0xf
    v_mov_b32 v21, v20
    v_permlane16_swap_b32 v20, v21
    v_max_f32 v20, v20, v21
    v_mov_b32 v21, v20
    v_permlane32_swap_b32 v20, v21
    v_max_f32 v20, v20, v21""")
    for i in range(4): A(f"v_sub_f32 v{24+4*i}, v{24+4*i}, v20")
    for i in range(4): A(f"v_mul_f32 v{24+4*i}, s78, v{24+4*i}")
    for i in range(4): A(f"v_exp_f32 v{40+i}, v{24+4*i}")
    A("""v_mul_f32 v20, v40, v26
    v_fmac_f32 v20, v41, v30
    v_fmac_f32 v20, v42, v34
    v_fmac_f32 v20, v43, v38
    v_add_f32_dpp v20, v20, v20 row_ror:8 row_mask:0xf bank_mask:0xf
    v_mov_b32 v21, v20
    v_permlane16_swap_b32 v20, v21
    v_add_f32 v20, v20, v21
    v_mov_b32 v21, v20
    v_permlane32_swap_b32 v20, v21
    v_add_f32 v20, v20, v21
    v_rcp_f32 v20, v20""")
    for i in range(4): A(f"v_mul_f32 v{40+i}, v{40+i}, v20")
    STAMP("S")
    poll("L_po", [f"global_load_dwordx4 v[{24+4*i}:{27+4*i}], v5, s[42:43] offset:{1024*i} {LD}" for i in range(4)],
         [25, 27, 29, 31, 33, 35, 37, 39], "-1")
    A("""v_mul_f32 v20, v40, v24
    v_mul_f32 v21, v40, v26
    v_fmac_f32 v20, v41, v28
    v_fmac_f32 v21, v41, v30
    v_fmac_f32 v20, v42, v32
    v_fmac_f32 v21, v42, v34
    v_fmac_f32 v20, v43, v36
    v_fmac_f32 v21, v43, v38
    v_permlane32_swap_b32 v20, v21
    v_add_f32 v20, v20, v21
    v_mov_b32 v21, v20
    v_permlane16_swap_b32 v20, v21
    v_add_f32 v20, v20, v21
    v_add_f32_dpp v20, v20, v20 row_ror:8 row_mask:0xf bank_mask:0xf
    v_cvt_pk_bf16_f32 v20, v20, v20
    s_mov_b64 exec, s[70:71]
    ds_write_b16 v13, v20
    s_mov_b64 exec, -1
    s_waitcnt lgkmcnt(0)""")
    STAMP("S")
    A("s_barrier                              ; B5")
    poll("L_pa", [f"global_load_dwordx4 v[{24+4*i}:{27+4*i}], v12, s[48:49] offset:{896*i} {LD}" for i in range(4)],
         [25, 27, 29, 31, 33, 35, 37, 39], "s[74:75]")
    A(f"""v_add_f32 v16, v24, v28
    v_add_f32 v21, v26, v30
    v_add_f32 v22, v32, v36
    v_add_f32 v23, v34, v38
    v_add_f32 v16, v16, v22
    v_add_f32 v21, v21, v23
    v_permlane32_swap_b32 v16, v21
    v_add_f32 v16, v16, v21
    v_mov_b32 v21, v16
    v_permlane16_swap_b32 v16, v21
    v_add_f32 v16, v16, v21
    v_add_f32_dpp v16, v16, v16 row_ror:8 row_mask:0xf bank_mask:0xf
    s_mov_b64 exec, s[72:73]
    global_store_dwordx2 v14, v[16:17], s[50:51] {ST}""")
    STAMP("S")
    A("""s_cmp_ge_u32 s2, 224
    s_cbranch_scc1 L_send
    s_barrier                              ; B6
    L_send:""")
    STAMP_FLUSH("S", "s")
    A("s_endpgm\nL_codeend:")
    body = A.finish()
    return wrap(body, 256, 576, LDS, 96, 102 if stamp else 80), A.nops

if __name__ == "__main__":
    txt, n = gen(); open("k1.s", "w").write(txt); print("nops", n, "LDS", LDS)
    txt, n = gen(stamp=True); open("k1_st.s", "w").write(txt)
```

```python
import sys, struct
from asmlib import Asm, wrap, NAME
def f32(x): return "0x%08x" % struct.unpack("<I", struct.pack("<f", x))[0]
KOFF, VOFF = 0, 65536
WOFF = 131072
QOFF = WOFF + 14336
POFF = QOFF + 1152
ZOFF = POFF + 1280
MOFF = ZOFF + 256
FOFF = MOFF + 8
LOFF = MOFF + 16
OOFF = LOFF + 256
HOFF = OOFF + 32
YOFF = HOFF + 16
LDS = YOFF + 64
STATS, HINT, H2C, H2B, QBUF, H1, H2A = 0x1000, 0x3000, 0x4000, 0x8000, 0x10000, 0x50000, 0xD0000
CEXP = 1.4426950408889634 / 16
K0 = -2 * 1.4426950408889634 * 0.7978845608028654
K1 = K0 * 0.044715
KN = NAME + "_kernel"

def gen(stamp=False, ST="sc1", LD="sc1", NT="nt", LOCAL=1, TLB=1, NVA=8, TOUCH=1, BOUND=20000, PRIO=1, NH=0, HOLD=0, GX=4, SW=0, DIAGV=0, WK=4, WV=4, NPACE=2, ACK=1, PIPE=1):
    A = Asm()
    nst = {"S": 0, "K": 0}
    slots = {"S": [100, 26, 98, 14] + list(range(78, 98, 2)), "K": [100, 14, 26] + list(range(80, 100, 2))}
    def STAMP(role):
        if not stamp: return
        k = nst[role]; nst[role] += 1
        r = slots[role][k]
        A(f"s_memrealtime s[{r}:{r+1}]")
    def STAMP_FLUSH(role):
        if not stamp: return
        base = 0 if role == "S" else 128
        A(f"""s_waitcnt lgkmcnt(0)
        s_lshl_b32 s34, s2, 8
        s_add_u32 s34, s34, {0x3F000000 + base}
        s_add_u32 s34, s28, s34
        s_addc_u32 s35, s29, 0
        s_mov_b64 exec, 1
        v_mov_b32 v1, 0""")
        for k in range(nst[role]):
            A(f"v_mov_b32 v2, s{slots[role][k]}\nv_mov_b32 v3, s{slots[role][k]+1}\nglobal_store_dwordx2 v1, v[2:3], s[34:35] offset:{8*k}\ns_nop 1")
    def dpp(op, v, r): return f"v_{op}_f32_dpp {v}, {v}, {v} row_ror:{r} row_mask:0xf bank_mask:0xf"
    def red32(v, t, fill=(), op="add"):
        fill = list(fill)
        def gap():
            for _ in range(2):
                if fill: A(fill.pop(0))
        A(f"v_mov_b32 {t}, {v}"); gap()
        A(f"v_permlane16_swap_b32 {v}, {t}\nv_{op}_f32 {v}, {v}, {t}")
        for r in (8, 4, 2, 1):
            gap(); A(dpp(op, v, r))
        for x in fill: A(x)
    def rnd_pair(lo, hi, a, b, tmp):
        A(f"v_cvt_pk_bf16_f32 {tmp}, {a}, {b}\nv_lshlrev_b32 {lo}, 16, {tmp}\nv_and_b32 {hi}, 0xffff0000, {tmp}")
    def ln_stats(pk, n, t, ones, fill=(), pre=None, post=None):
        if pre: A(pre)
        for i, x in enumerate(pk):
            A(f"v_dot2_f32_bf16 v{t}, v{x}, {ones}, {'0' if (i == 0 and not pre) else 'v%d' % t}")
            A(f"v_dot2_f32_bf16 v{t+1}, v{x}, v{x}, {'0' if (i == 0 and not pre) else 'v%d' % (t+1)}")
        if post: A(post)
        fill = list(fill)
        for _ in range(3):
            if fill: A(fill.pop(0))
        A(f"v_permlane32_swap_b32 v{t}, v{t+1}\nv_add_f32 v{t}, v{t}, v{t+1}")
        red32(f"v{t}", f"v{t+1}", fill)
        A(f"""v_mul_f32 v{t}, {f32(1.0/n)}, v{t}
        v_mul_f32 v{t+1}, 1.0, v{t}
        v_permlane32_swap_b32 v{t}, v{t+1}
        v_fma_f32 v{t+1}, -v{t}, v{t}, v{t+1}
        v_max_f32 v{t+1}, 0, v{t+1}
        v_cvt_pk_bf16_f32 v{t+2}, -v{t}, v{t+1}
        v_and_b32 v{t+1}, 0xffff0000, v{t+2}
        v_add_f32 v{t+1}, {f32(1e-5)}, v{t+1}
        v_cvt_pk_bf16_f32 v{t+1}, v{t+1}, v{t+1}
        v_lshlrev_b32 v{t+1}, 16, v{t+1}
        v_sqrt_f32 v{t+1}, v{t+1}
        v_lshlrev_b32 v{t}, 16, v{t+2}
        v_cvt_pk_bf16_f32 v{t+1}, v{t+1}, v{t+1}
        v_lshlrev_b32 v{t+1}, 16, v{t+1}
        v_rcp_f32 v{t+1}, v{t+1}""")
    def ln_apply(pairs, t, outs):
        for a in pairs: A(f"v_pk_add_f32 v[{a}:{a+1}], v[{a}:{a+1}], v[{t}:{t+1}] op_sel_hi:[1,0]")
        for a, o in zip(pairs, outs): A(f"v_cvt_pk_bf16_f32 v{o}, v{a}, v{a+1}")
        for a, o in zip(pairs, outs): A(f"v_lshlrev_b32 v{a}, 16, v{o}\nv_and_b32 v{a+1}, 0xffff0000, v{o}")
        for a in pairs: A(f"v_pk_mul_f32 v[{a}:{a+1}], v[{a}:{a+1}], v[{t}:{t+1}] op_sel:[0,1] op_sel_hi:[1,1]")
        for a, o in zip(pairs, outs): A(f"v_cvt_pk_bf16_f32 v{o}, v{a}, v{a+1}")
    def check(tags, mask, xcc=False):
        if xcc:
            for t in tags: A(f"v_xor_b32 v{t}, s33, v{t}")
            for t in tags: A(f"v_cmpx_gt_u32 vcc, 16, v{t}")
        else:
            for t in tags: A(f"v_cmpx_eq_u32 vcc, s33, v{t}")
        A(f"s_cmp_eq_u64 exec, {mask}\ns_mov_b64 exec, -1")
    def poll(label, loads, tags, mask, xcc=False, entry=None):
        A("s_mov_b32 s77, 0")
        if entry: A(f"s_branch {label}_{entry}")
        A(f"{label}:")
        if mask != "-1": A(f"s_mov_b64 exec, {mask}")
        for l in loads: A(l)
        A(f"s_add_u32 s77, s77, 1\ns_cmp_gt_u32 s77, {BOUND}\ns_cbranch_scc1 {label}_x")
        if entry == "w": A(f"{label}_w:")
        if entry == "w1": A(f"s_waitcnt vmcnt(0)\n{label}_w1:\ns_waitcnt vmcnt(1)")
        else: A("s_waitcnt vmcnt(0)")
        check(tags, mask, xcc)
        A(f"s_cbranch_scc0 {label}\n{label}_x:\ns_mov_b64 exec, -1")
    def ppoll(label, loads, tags, mask, first, bases, mid=None):
        n = sum(1 for l in loads(bases[0]) if l.startswith(("global_", "buffer_")))
        a, b = bases
        def issue(x):
            for l in loads(x): A(l)
        A("s_mov_b32 s77, 0")
        if mask != "-1": A(f"s_mov_b64 exec, {mask}")
        issue(a)
        if mid: mid()
        A(f"{label}:")
        for cur, nxt, nm in ((a, b, "a"), (b, a, "b")):
            issue(nxt)
            A(f"s_waitcnt vmcnt({n})")
            for t in tags(cur): A(f"v_cmpx_eq_u32 vcc, s33, v{t}")
            A(f"s_cmp_eq_u64 exec, {mask}\ns_mov_b64 exec, {mask}")
            if nm == "a": A(f"s_cbranch_scc1 {label}_a")
        A(f"s_cbranch_scc1 {label}_b\ns_add_u32 s77, s77, 1\ns_cmp_gt_u32 s77, {BOUND}\ns_cbranch_scc0 {label}")
        A(f"{label}_b:\ns_mov_b64 exec, -1")
        first(b)
        A(f"s_branch {label}_d\n{label}_a:\ns_mov_b64 exec, -1")
        first(a)
        A(f"{label}_d:")
    fl = [0]
    def lstore(text):
        fl[0] += 1
        if not LOCAL: A(f"{text} {ST}"); return
        A(f"s_cmp_lg_u32 s3, 0\ns_cbranch_scc1 L_pl{fl[0]}\n{text} {ST}\ns_branch L_pd{fl[0]}\nL_pl{fl[0]}:\n{text}\nL_pd{fl[0]}:")
    def ploop(label, vaddr, srd, n, win=0):
        A(f"""{label}:
        {f"s_waitcnt vmcnt({win-1})" if win else ""}
        buffer_load_dwordx4 {vaddr}, {srd}, s35 offen {NT} lds
        s_add_u32 s35, s35, 0x2000
        s_add_u32 m0, m0, 0x2000
        s_cmp_lt_u32 s35, {0x2000*n}
        s_cbranch_scc1 {label}""")
    def pack4(d, v):
        for i in range(3): A(f"v_perm_b32 v{d+i}, v{v+i}, v{v+3}, s{72+i}")
    def unpack4(d, out):
        A(f"v_perm_b32 v{out}, v{d+1}, v{d}, s75\nv_perm_b32 v{out}, v{d+2}, v{out}, s76")

    STAMP("S"); nst["K"] = nst["S"]
    A(f"""v_lshrrev_b32 v2, 6, v0
    s_cmp_ge_u32 s2, 256
    s_cbranch_scc1 L_end
    s_load_dwordx16 s[4:19], s[0:1], 0
    s_load_dwordx8 s[20:27], s[0:1], 64
    s_load_dwordx2 s[28:29], s[0:1], 96
    v_readfirstlane_b32 s32, v2
    v_and_b32 v1, 63, v0
    s_and_b32 s30, s2, 7
    s_lshr_b32 s31, s2, 3
    s_cmp_eq_u32 s32, 0
    s_cbranch_scc0 L_kv
    s_getpc_b64 s[72:73]
    L_pc:
    s_sub_u32 s72, s72, L_pc-{KN}
    s_subb_u32 s73, s73, 0
    v_lshl_add_u32 v6, s31, 3, v1
    v_lshlrev_b32 v6, 6, v6
    v_min_u32 v6, L_codeend-4-{KN}, v6
    s_mov_b64 exec, 0xff
    global_load_dword v96, v6, s[72:73]
    s_mov_b64 exec, -1
    v_lshrrev_b32 v6, 3, v1                ; rr
    v_and_b32 v3, 7, v1                    ; ch
    v_mul_u32_u24 v7, {14*8192}, v6
    v_lshl_add_u32 v7, v3, 4, v7
    s_lshr_b32 s36, s31, 3
    s_mul_i32 s34, s36, {112*8192}
    s_and_b32 s35, s31, 7
    s_lshl_b32 s35, s35, 7
    s_add_u32 s34, s34, s35
    s_lshl_b32 s35, s30, 10
    s_add_u32 s34, s34, s35
    s_mul_i32 s36, s36, 224
    v_mul_u32_u24 v23, 28, v6
    v_add_u32 v23, s36, v23
    v_lshlrev_b32 v5, 4, v1                ; l*16
    s_mov_b32 m0, {WOFF}
    s_mov_b32 s38, {111*8192+128}
    s_mov_b32 s39, 0x20000
    s_mov_b32 s35, 0
    s_waitcnt lgkmcnt(0)
    s_add_u32 s36, s10, s34
    s_addc_u32 s37, s11, 0
    s_mov_b32 s6, 896
    s_mov_b32 s7, 0x20000
    buffer_load_dwordx4 v[16:19], v5, s[4:7], 0 offen
    global_load_dwordx4 v[8:11], v23, s[4:5]
    global_load_dwordx3 v[12:14], v23, s[4:5] offset:16
    L_wl:
    buffer_load_dwordx4 v7, s[36:39], s35 offen {NT} lds
    s_add_u32 s35, s35, 0x2000
    s_add_u32 m0, m0, 0x400
    s_cmp_lt_u32 s35, {14*0x2000}
    s_cbranch_scc1 L_wl
    s_barrier                              ; B0
    s_branch L_svc
    L_kv:
    s_sub_u32 s32, s32, 1
    s_lshl_b32 m0, s32, 10
    v_lshrrev_b32 v2, 5, v1
    v_lshl_add_u32 v2, s32, 1, v2
    v_and_b32 v3, 31, v1                   ; pos
    v_xor_b32 v4, v3, v2
    v_lshlrev_b32 v4, 4, v4
    v_lshl_add_u32 v4, v2, 9, v4
    v_and_b32 v5, 7, v2
    v_lshlrev_b32 v5, 1, v5
    v_xor_b32 v5, v3, v5
    v_lshlrev_b32 v5, 4, v5
    v_lshl_add_u32 v5, v2, 9, v5
    s_lshl_b32 s34, s30, 25
    s_lshl_b32 s35, s31, 16
    s_add_u32 s34, s34, s35
    s_add_u32 s34, s34, 0x1E00000
    s_mov_b32 s38, 0x10000
    s_mov_b32 s39, 0x20000
    s_mov_b32 s42, 0x10000
    s_mov_b32 s43, 0x20000
    s_mov_b32 s35, 0
    s_waitcnt lgkmcnt(0)
    s_load_dword s33, s[28:29], 0
    s_add_u32 s36, s6, s34
    s_addc_u32 s37, s7, 0
    s_add_u32 s40, s8, s34
    s_addc_u32 s41, s9, 0
    s_barrier                              ; B0""")
    ploop("L_kl", "v4", "s[36:39]", 8, WK)
    STAMP("K")
    A("s_branch L_kv2\n;;SEG kv2\nL_kv2:")
    A(f"""v_and_b32 v2, 15, v1                   ; r / j
    v_lshrrev_b32 v3, 4, v1                ; c
    s_lshl_b32 s34, s32, 13
    v_xor_b32 v6, v3, v2
    v_lshlrev_b32 v6, 4, v6
    v_lshl_add_u32 v6, v2, 9, v6
    v_add_u32 v6, s34, v6
    v_xor_b32 v7, 64, v6
    v_xor_b32 v8, 0x80, v6
    v_xor_b32 v9, 0xc0, v6
    v_and_b32 v4, 1, v2                    ; head
    v_mul_u32_u24 v10, 576, v4
    v_lshl_add_u32 v10, v3, 4, v10
    v_add_u32 v10, {QOFF}, v10
    v_lshlrev_b32 v11, 2, v4
    v_add_u32 v11, {MOFF}, v11
    s_lshl_b32 s34, s32, 4
    s_add_u32 s34, s34, {LOFF}
    v_lshlrev_b32 v12, 7, v4
    v_lshl_add_u32 v12, v3, 2, v12
    v_add_u32 v12, s34, v12
    v_lshrrev_b32 v21, 2, v2               ; bank = j>>2
    v_lshlrev_b32 v17, 4, v4
    v_add_u32 v17, v17, v21
    v_lshl_add_u32 v17, s32, 1, v17
    v_lshlrev_b32 v17, 11, v17
    v_lshl_add_u32 v17, v3, 4, v17
    v_lshl_add_u32 v20, s32, 2, v21
    v_lshlrev_b32 v20, 11, v20
    v_lshl_add_u32 v20, v3, 4, v20
    v_and_b32 v4, 3, v2
    v_mul_u32_u24 v13, 320, v4
    v_lshl_add_u32 v13, v3, 4, v13
    v_add_u32 v13, {POFF}, v13
    s_lshr_b32 s34, s32, 1
    s_lshl_b32 s34, s34, 6
    s_and_b32 s72, s32, 1
    s_lshl_b32 s72, s72, 3
    s_add_u32 s34, s34, s72
    v_add_u32 v14, s34, v13
    v_mov_b32 v4, {ZOFF}
    v_cmp_eq_u32 vcc, 1, v21
    v_cndmask_b32 v23, v4, v13, vcc
    v_cmp_eq_u32 vcc, 0, v21
    v_cndmask_b32 v13, v4, v13, vcc
    v_lshlrev_b32 v19, 3, v3
    v_add_u32 v19, {OOFF}, v19
    v_cndmask_b32 v96, v4, v19, vcc
    v_cmp_eq_u32 vcc, 1, v21
    v_cndmask_b32 v97, v4, v19, vcc
    v_cmp_eq_u32 vcc, 2, v21
    v_cndmask_b32 v98, v4, v19, vcc
    v_cmp_eq_u32 vcc, 3, v21
    v_cndmask_b32 v99, v4, v19, vcc
    v_lshrrev_b32 v4, 2, v1                ; key_l = l>>2
    v_and_b32 v21, 7, v4
    v_lshlrev_b32 v21, 1, v21
    v_bfe_u32 v15, v1, 1, 1                ; cc>>1
    v_lshl_add_u32 v15, s32, 2, v15
    v_xor_b32 v15, v15, v21
    v_lshlrev_b32 v15, 4, v15
    v_lshl_add_u32 v15, v4, 9, v15
    v_and_b32 v21, 1, v1
    v_lshl_add_u32 v15, v21, 3, v15
    v_add_u32 v15, {VOFF}, v15
    v_xor_b32 v16, 32, v15                 ; ct1
    s_lshl_b32 s34, s32, 11
    s_add_u32 s62, s34, {WOFF}
    v_and_b32 v21, 3, v1
    v_lshlrev_b32 v19, 7, v4
    v_lshl_add_u32 v19, v21, 3, v19
    v_add_u32 v19, s62, v19
    v_lshrrev_b32 v18, 3, v1
    v_mul_u32_u24 v18, 896, v18
    v_and_b32 v21, 7, v1
    v_lshl_add_u32 v18, v21, 4, v18
    v_lshl_add_u32 v18, s32, 7, v18
    s_lshl_b32 s34, s30, 16
    s_lshl_b32 s72, s31, 6
    s_add_u32 s34, s34, s72
    s_add_u32 s34, s34, {H1}
    s_add_u32 s64, s28, s34
    s_addc_u32 s65, s29, 0
    s_add_u32 s66, s64, {H2A-H1}
    s_addc_u32 s67, s65, 0
    s_lshl_b32 s34, s30, 9
    s_lshl_b32 s72, s31, 4
    s_add_u32 s34, s34, s72
    s_mul_i32 s34, s34, 896
    s_add_u32 s44, s12, s34
    s_addc_u32 s45, s13, 0
    s_mov_b32 s46, 14336
    s_mov_b32 s47, 0x20000
    s_mov_b32 s48, s16
    s_mov_b32 s49, s17
    s_mov_b32 s50, 3584
    s_mov_b32 s51, 0x20000
    s_mov_b32 s52, s18
    s_mov_b32 s53, s19
    s_mov_b32 s54, 3584
    s_mov_b32 s55, 0x20000
    s_mov_b32 s56, s20
    s_mov_b32 s57, s21
    s_mov_b32 s58, 3584
    s_mov_b32 s59, 0x20000
    s_mov_b32 s68, 0x00030003
    s_mov_b32 s69, 0x00030003
    s_mov_b32 s70, 0x000f000f
    s_mov_b32 s71, 0x000f000f
    s_mov_b32 s60, 0xcccccccc
    s_mov_b32 s61, 0xcccccccc
    s_mov_b32 s78, {f32(CEXP)}
    s_mov_b32 s72, 0x07060501
    s_mov_b32 s73, 0x07060502
    s_mov_b32 s74, 0x07060503
    s_movk_i32 s63, {8*896}
    v_subrev_u32 v0, 64, v0                ; kt
    v_lshlrev_b32 v2, 3, v0
    v_mov_b32 v22, {FOFF}
    s_mov_b32 s35, 0
    s_waitcnt lgkmcnt(0)
    s_mul_i32 s33, s33, 0x9E3779B1
    s_add_u32 s33, s33, 0x7F4A7C15
    v_mov_b32 v95, s33""")
    if HOLD == 2: A(f"s_waitcnt vmcnt({GX})\ns_barrier                              ; B1b")
    if HOLD: A("s_barrier")
    STAMP("K")
    if NPACE: ploop("L_vp", "v5", "s[40:43]", min(NPACE, NVA), WV)
    if NPACE < NVA: ploop("L_va", "v5", "s[40:43]", NVA)
    A(f"""buffer_load_dwordx2 v[64:65], v2, s[48:51], 0 offen
    buffer_load_dwordx2 v[66:67], v2, s[52:55], 0 offen
    buffer_load_dwordx2 v[68:69], v2, s[56:59], 0 offen
    s_waitcnt vmcnt({0 if DIAGV else NVA+3})""")
    STAMP("K")
    A("s_barrier")
    STAMP("K")
    A("ds_read_b32 v22, v22")
    QR = [24, 28, 32, 36, 40, 44, 48, 52]; BR = [56, 60, 72, 76, 80, 84, 88, 100]
    for j in range(8):
        A(f"ds_read_b128 v[{QR[j]}:{QR[j]+3}], v{6+(j&3)} offset:{256*(j>>2)}")
        A(f"ds_read_b128 v[{BR[j]}:{BR[j]+3}], v10 offset:{64*j}")
    if stamp: A("s_waitcnt lgkmcnt(0)")
    for j in range(8):
        A(f"s_waitcnt lgkmcnt({14-2*j})")
        if j == 1: A("v_readfirstlane_b32 s3, v22")
        A(f"v_mfma_f32_16x16x32_bf16 v[104:107], v[{QR[j]}:{QR[j]+3}], v[{BR[j]}:{BR[j]+3}], {'0' if j == 0 else 'v[104:107]'}")
    rnd_pair("v88", "v89", "v104", "v105", "v24")
    rnd_pair("v90", "v91", "v106", "v107", "v25")
    A(f"""v_max3_f32 v24, v88, v89, v90
    v_max_f32 v24, v24, v91
    s_mov_b64 exec, s[68:69]
    ds_max_f32 v11, v24
    s_mov_b64 exec, -1
    s_waitcnt lgkmcnt(0)
    s_barrier                              ; B3
    ds_read_b32 v24, v11
    s_waitcnt lgkmcnt(0)""")
    for i in range(4): A(f"v_sub_f32 v{88+i}, v{88+i}, v24")
    for i in range(4): A(f"v_mul_f32 v{88+i}, s78, v{88+i}")
    for i in range(4): A(f"v_exp_f32 v{88+i}, v{88+i}")
    A("v_add_f32 v24, v88, v89\nv_add_f32 v25, v90, v91\nv_add_f32 v24, v24, v25")
    rnd_pair("v26", "v27", "v88", "v89", "v30")
    rnd_pair("v28", "v29", "v90", "v91", "v31")
    for i in range(4): A(f"v_sub_f32 v{26+i}, v{88+i}, v{26+i}")
    for i in range(4): A(f"v_cndmask_b32 v{26+i}, v{88+i}, v{26+i}, s[60:61]")
    A(f"""v_cvt_pk_bf16_f32 v26, v26, v27
    v_cvt_pk_bf16_f32 v27, v28, v29
    s_mov_b64 exec, s[70:71]
    ds_write_b64 v14, v[26:27]
    s_mov_b64 exec, s[68:69]
    ds_write_b32 v12, v24
    s_mov_b64 exec, -1""")
    if NVA < 8: ploop("L_vb", "v5", "s[40:43]", 8)
    A("s_waitcnt lgkmcnt(0)\ns_barrier                              ; B3b")
    STAMP("K")
    P0 = [56, 60, 72, 76]; P1 = [80, 84, 88, 100]
    for t in range(4): A(f"ds_read_b128 v[{P0[t]}:{P0[t]+3}], v13 offset:{64*t}\nds_read_b128 v[{P1[t]}:{P1[t]+3}], v23 offset:{64*t}")
    A(f"""s_mov_b32 s68, 0x00330033
    s_mov_b32 s69, 0x00330033
    s_mov_b32 s70, 0x11111111
    s_mov_b32 s71, 0x11111111
    s_mov_b32 s16, {f32(K1)}
    s_mov_b32 s17, {f32(K1)}
    v_lshrrev_b32 v6, 5, v1
    s_lshl_b32 s34, s32, 2
    s_add_u32 s34, s34, {YOFF}
    v_lshlrev_b32 v7, 5, v6
    v_add_u32 v12, s34, v7
    v_mov_b32 v14, {HOFF}
    s_cmp_eq_u32 s32, 7
    s_cbranch_scc1 L_w7a
    s_mov_b32 m0, s62
    s_nop 0
    buffer_load_dwordx4 v18, s[44:47], 0 offen {NT} lds
    s_add_u32 m0, m0, 0x400
    s_nop 0
    buffer_load_dwordx4 v18, s[44:47], s63 offen {NT} lds
    s_waitcnt vmcnt(2) lgkmcnt(0)
    s_branch L_w7b
    L_w7a:
    s_waitcnt vmcnt(0) lgkmcnt(0)
    L_w7b:""")
    STAMP("K")
    A("s_barrier")
    for t in range(4):
        for ct in range(2):
            for u in range(2):
                r = 24 + 8*t + 4*ct + 2*u
                A(f"ds_read_b64_tr_b16 v[{r}:{r+1}], v{15+ct} offset:{16384*t + 8192*u}")
    if stamp: A("s_waitcnt lgkmcnt(0)")
    for t in range(4):
        for ct in range(2):
            r = 24 + 8*t + 4*ct
            p = (P0, P1)[ct][t]
            A(f"s_waitcnt lgkmcnt({14 - 4*t - 2*ct})")
            A(f"v_mfma_f32_16x16x32_bf16 v[104:107], v[{r}:{r+3}], v[{p}:{p+3}], {'0' if t + ct == 0 else 'v[104:107]'}")
    for i in range(4): A(f"v_add_f32_dpp v{104+i}, v{104+i}, v{104+i} quad_perm:[2,3,0,1] row_mask:0xf bank_mask:0xf")
    pack4(92, 104)
    A("s_mov_b64 exec, s[68:69]")
    lstore("global_store_dwordx4 v17, v[92:95], s[64:65]")
    STAMP("K")
    A("""s_mov_b64 exec, -1
    s_cmp_eq_u32 s32, 7
    s_cbranch_scc1 L_kend
    s_waitcnt vmcnt(1)""")
    for t in range(4): A(f"ds_read_b64_tr_b16 v[{24+2*t}:{25+2*t}], v19 offset:{32*t}")
    A(f"""v_lshlrev_b32 v40, 16, v64
    v_and_b32 v41, 0xffff0000, v64
    v_lshlrev_b32 v42, 16, v65
    v_and_b32 v43, 0xffff0000, v65
    v_lshlrev_b32 v44, 16, v66
    v_and_b32 v45, 0xffff0000, v66
    v_lshlrev_b32 v46, 16, v67
    v_and_b32 v47, 0xffff0000, v67
    v_mov_b32 v48, {f32(K0)}
    v_mov_b32 v49, {f32(K0)}
    v_mov_b32 v50, 1.0
    v_mov_b32 v51, 1.0
    s_waitcnt lgkmcnt(0)
    s_barrier""")
    for t in range(4): A(f"ds_read_b64 v[{32+2*t}:{33+2*t}], v{96+t}")
    if stamp: A("s_waitcnt lgkmcnt(0)")
    for t in range(4):
        A(f"s_waitcnt lgkmcnt({3-t})")
        A(f"v_mfma_f32_16x16x16_bf16 v[104:107], v[{24+2*t}:{25+2*t}], v[{32+2*t}:{33+2*t}], {'0' if t == 0 else 'v[104:107]'}")
    pack4(92, 104)
    A("s_mov_b64 exec, s[70:71]")
    lstore("global_store_dwordx4 v20, v[92:95], s[66:67]")
    A("s_mov_b64 exec, -1")
    STAMP("K")
    A("""s_cmp_ge_u32 s2, 224
    s_cbranch_scc1 L_kend
    s_mov_b32 s68, 1
    s_mov_b32 s69, 1
    s_barrier
    ds_read_b64 v[32:33], v14
    s_waitcnt lgkmcnt(0)""")
    STAMP("K")
    sel = ["op_sel:[0,0] op_sel_hi:[1,0]", "op_sel:[0,1] op_sel_hi:[1,1]"]
    items = [(c, p) for c in range(2) for p in range(2)]
    U = lambda c, p: 72 + 4*c + 2*p
    Z = lambda c, p: 80 + 4*c + 2*p
    for c, p in items: A(f"v_pk_mul_f32 v[{U(c,p)}:{U(c,p)+1}], v[{40+2*p}:{41+2*p}], v[32:33] {sel[c]}")
    for c, p in items: A(f"v_cvt_pk_bf16_f32 v{Z(c,p)}, v{U(c,p)}, v{U(c,p)+1}")
    for c, p in items: A(f"v_lshlrev_b32 v{U(c,p)}, 16, v{Z(c,p)}\nv_and_b32 v{U(c,p)+1}, 0xffff0000, v{Z(c,p)}")
    for c, p in items: A(f"v_pk_add_f32 v[{U(c,p)}:{U(c,p)+1}], v[{U(c,p)}:{U(c,p)+1}], v[{44+2*p}:{45+2*p}]")
    for c, p in items: A(f"v_cvt_pk_bf16_f32 v{Z(c,p)}, v{U(c,p)}, v{U(c,p)+1}")
    for c, p in items: A(f"v_lshlrev_b32 v{U(c,p)}, 16, v{Z(c,p)}\nv_and_b32 v{U(c,p)+1}, 0xffff0000, v{Z(c,p)}")
    for c, p in items: A(f"v_pk_mul_f32 v[{Z(c,p)}:{Z(c,p)+1}], v[{U(c,p)}:{U(c,p)+1}], v[{U(c,p)}:{U(c,p)+1}]")
    for c, p in items: A(f"v_pk_fma_f32 v[{Z(c,p)}:{Z(c,p)+1}], v[{Z(c,p)}:{Z(c,p)+1}], s[16:17], v[48:49]")
    for c, p in items: A(f"v_pk_mul_f32 v[{Z(c,p)}:{Z(c,p)+1}], v[{Z(c,p)}:{Z(c,p)+1}], v[{U(c,p)}:{U(c,p)+1}]")
    for c, p in items: A(f"v_exp_f32 v{Z(c,p)}, v{Z(c,p)}\nv_exp_f32 v{Z(c,p)+1}, v{Z(c,p)+1}")
    for c, p in items: A(f"v_pk_add_f32 v[{Z(c,p)}:{Z(c,p)+1}], v[{Z(c,p)}:{Z(c,p)+1}], v[50:51]")
    for c, p in items: A(f"v_rcp_f32 v{Z(c,p)}, v{Z(c,p)}\nv_rcp_f32 v{Z(c,p)+1}, v{Z(c,p)+1}")
    for c, p in items: A(f"v_pk_mul_f32 v[{Z(c,p)}:{Z(c,p)+1}], v[{Z(c,p)}:{Z(c,p)+1}], v[{U(c,p)}:{U(c,p)+1}]")
    for c, p in items: A(f"v_cvt_pk_bf16_f32 v{Z(c,p)}, v{Z(c,p)}, v{Z(c,p)+1}")
    for c in range(2): A(f"v_dot2_f32_bf16 v{24+c}, v{Z(c,0)}, v68, 0")
    for c in range(2): A(f"v_dot2_f32_bf16 v{24+c}, v{Z(c,1)}, v69, v{24+c}")
    A("v_permlane32_swap_b32 v24, v25\nv_add_f32 v24, v24, v25")
    red32("v24", "v25")
    A("""s_mov_b64 exec, s[68:69]
    ds_write_b32 v12, v24
    s_waitcnt lgkmcnt(0)""")
    STAMP("K")
    A("s_barrier                              ; B7")
    A("L_kend:")
    if stamp:
        A(f"s_cmp_lg_u32 s32, {SW}\ns_cbranch_scc1 L_end")
        STAMP_FLUSH("K")
    A("L_end:\ns_endpgm")

    A(f""";;SEG svc
    L_svc:
    {"s_setprio 3" if PRIO else ""}
    s_load_dword s33, s[28:29], 0
    v_lshlrev_b32 v15, 2, v1
    v_add_u32 v7, {ZOFF}, v15
    v_mov_b32 v20, 0
    ds_write_b32 v7, v20
    s_mov_b64 exec, 1
    v_mov_b32 v7, {MOFF}
    v_mov_b32 v20, 0xff800000
    v_mov_b32 v21, 0xff800000
    ds_write_b64 v7, v[20:21]
    s_mov_b64 exec, -1
    s_lshl_b32 s34, s30, 14
    s_add_u32 s34, s34, {QBUF}
    s_add_u32 s60, s28, s34
    s_addc_u32 s61, s29, 0
    s_mov_b32 s62, 0x24000
    s_mov_b32 s63, 0x20000
    s_lshl_b32 s34, s31, 9
    s_add_u32 s58, s60, s34
    s_addc_u32 s59, s61, 0
    s_lshl_b32 s34, s30, 7
    s_add_u32 s34, s34, {HINT}
    s_add_u32 s40, s28, s34
    s_addc_u32 s41, s29, 0
    v_lshlrev_b32 v7, 7, v1
    s_mov_b64 exec, 15
    global_load_dword v97, v7, s[58:59]
    s_mov_b64 exec, -1
    s_getreg_b32 s56, hwreg(HW_REG_XCC_ID, 0, 4)
    s_mov_b32 s74, 0x05040100
    s_mov_b32 s75, 0x07060302
    s_mov_b32 s57, 0x3f803f80
    v_add_u32 v4, {WOFF}, v5
    v_lshrrev_b32 v2, 4, v1
    v_lshl_add_u32 v2, v3, 2, v2
    v_lshlrev_b32 v2, 4, v2
    s_waitcnt vmcnt(15) lgkmcnt(0)
    s_mul_i32 s33, s33, 0x9E3779B1
    s_add_u32 s33, s33, 0x7F4A7C15""")
    STAMP("S")
    unp = []
    for i in range(7): unp += [f"v_lshlrev_b32 v{24+2*i}, 16, v{8+i}", f"v_and_b32 v{25+2*i}, 0xffff0000, v{8+i}"]
    ln_stats([16, 17, 18, 19], 448, 20, "s57", fill=unp)
    ln_apply([24+2*i for i in range(7)], 20, [8+i for i in range(7)])
    A("s_xor_b32 s34, s33, s56\nv_mov_b32 v17, s34\nv_mov_b32 v19, s34\ns_mov_b32 s68, 0x00ff00ff\ns_mov_b32 s69, 0x00ff00ff")
    for i in range(7):
        A(f"s_waitcnt vmcnt({13-2*i})")
        A(f"ds_read_b128 v[{40+8*i}:{43+8*i}], v4 offset:{2048*i}\nds_read_b128 v[{44+8*i}:{47+8*i}], v4 offset:{2048*i+1024}")
        if i == 0: continue
        A("s_waitcnt lgkmcnt(0)" if stamp else "s_waitcnt lgkmcnt(2)")
        for jj in ([i-1] if i < 6 else [5, 6]):
            if jj == 6: A("s_waitcnt lgkmcnt(0)")
            a_, b_ = 40+8*jj, 44+8*jj
            for k in range(4):
                A(f"v_perm_b32 v{32+2*k}, v{b_+k}, v{a_+k}, s74\nv_perm_b32 v{33+2*k}, v{b_+k}, v{a_+k}, s75")
            for k in range(8):
                A(f"v_dot2_f32_bf16 v{24+k}, v{32+k}, v{8+jj}, {'0' if jj == 0 else 'v%d' % (24+k)}")
    for k in range(4): A(f"v_permlane32_swap_b32 v{24+k}, v{28+k}")
    for k in range(4): A(f"v_add_f32 v{24+k}, v{24+k}, v{28+k}")
    for k in range(2): A(f"v_permlane16_swap_b32 v{24+k}, v{26+k}")
    A(f"""v_add_f32 v16, v24, v26
    v_add_f32 v18, v25, v27
    {dpp('add', 'v16', 8)}
    {dpp('add', 'v18', 8)}
    s_mov_b64 exec, s[68:69]
    global_store_dwordx4 v2, v[16:19], s[58:59]
    s_mov_b64 exec, -1
    v_add_u32 v2, 0x20000, v2""")
    STAMP("S")
    A(f"""    s_lshl_b32 s34, s30, 5
    s_add_u32 s34, s34, s31
    s_lshl_b32 s35, s34, 11
    s_add_u32 s35, s35, {H1}
    s_add_u32 s42, s28, s35
    s_addc_u32 s43, s29, 0                 ; H1 inbox
    s_add_u32 s48, s42, {H2A-H1}
    s_addc_u32 s49, s43, 0                 ; H2A inbox
    s_lshl_b32 s34, s30, 10
    s_add_u32 s34, s34, {STATS}
    s_add_u32 s46, s28, s34
    s_addc_u32 s47, s29, 0
    s_lshr_b32 s34, s31, 4
    s_lshl_b32 s34, s34, 9
    s_add_u32 s44, s46, s34
    s_addc_u32 s45, s47, 0
    s_lshl_b32 s35, s31, 7
    s_add_u32 s35, s35, {H2B}
    s_add_u32 s52, s28, s35
    s_addc_u32 s53, s29, 0
    s_lshl_b32 s34, s30, 12
    s_add_u32 s50, s52, s34
    s_addc_u32 s51, s53, 0                 ; H2B out
    s_lshl_b32 s34, s30, 11
    s_add_u32 s34, s34, {H2C}
    s_add_u32 s40, s28, s34
    s_addc_u32 s41, s29, 0
    s_lshl_b32 s35, s31, 6
    s_add_u32 s54, s40, s35
    s_addc_u32 s55, s41, 0                 ; H2C out
    v_add_u32 v4, {LOFF}, v15
    v_lshrrev_b32 v7, 5, v1                ; half
    v_lshlrev_b32 v8, 2, v7
    v_add_u32 v8, {MOFF}, v8
    s_lshl_b32 s34, s31, 4
    v_lshl_add_u32 v9, v7, 9, s34
    v_lshrrev_b32 v10, 2, v1
    v_lshlrev_b32 v10, 4, v10
    v_and_b32 v11, 3, v1                   ; gq
    v_lshrrev_b32 v13, 4, v1
    v_lshl_add_u32 v13, v11, 2, v13
    v_lshlrev_b32 v13, 1, v13
    v_add_u32 v13, {OOFF}, v13
    v_lshl_add_u32 v14, v11, 1, v7
    v_lshlrev_b32 v14, 4, v14
    v_lshlrev_b32 v12, 4, v3
    v_lshl_add_u32 v12, v6, 12, v12
    v_lshlrev_b32 v88, 3, v3
    s_lshl_b32 s34, s31, 5
    v_lshl_add_u32 v89, v3, 2, s34
    s_lshl_b32 s34, s2, 3
    v_mov_b32 v90, s34
    v_lshlrev_b32 v91, 5, v7
    v_add_u32 v91, {YOFF}, v91
    s_lshl_b32 s34, s2, 2
    v_lshl_add_u32 v92, v7, 1, s34
    v_add_u32 v15, {QOFF}, v15
    v_mov_b32 v93, 0

    s_mov_b32 s67, 0
    s_movk_i32 s64, 0x1000
    s_movk_i32 s65, 0x2000
    s_movk_i32 s66, 0x3000""")
    if ACK: A("s_waitcnt vmcnt(0)")
    STAMP("S")
    qloads = [f"buffer_load_dwordx4 v[{24+4*i}:{27+4*i}], v5, s[60:63], {['s67','s64','s65','s66'][i>>2]} offen offset:{1024*(i&3)} {LD}" for i in range(16)]
    for l in qloads: A(l)
    A(f"s_mov_b64 exec, s[68:69]\nglobal_store_dwordx4 v2, v[16:19], s[58:59] {ST}\ns_mov_b64 exec, -1")
    STAMP("S")
    A("""""")
    sw = ["s_cmp_eq_u32 s77, 1", "s_cbranch_scc0 L_nsw", "s_add_u32 s67, s67, 0x20000", "s_add_u32 s64, s64, 0x20000", "s_add_u32 s65, s65, 0x20000", "s_add_u32 s66, s66, 0x20000", "L_nsw:"]
    poll("L_pq", sw + qloads, [25+2*i for i in range(32)], "-1", xcc=True, entry="w1")
    for i in range(0, 32, 2): A(f"v_cmpx_eq_u32 vcc, s56, v{25+2*i}")
    A("s_cmp_eq_u64 exec, -1\ns_cselect_b32 s3, 1, 0\ns_mov_b64 exec, -1")
    for j in range(4):
        for h in range(2):
            r = 24 + 4*j + 2*h
            A(f"v_add_f32 v{r}, v{r}, v{r+16}\nv_add_f32 v{r+32}, v{r+32}, v{r+48}\nv_add_f32 v{r}, v{r}, v{r+32}")
        A(f"v_cvt_pk_bf16_f32 v{24+4*j}, v{24+4*j}, v{26+4*j}")
    A(f"""v_mov_b32 v20, {FOFF}
    v_mov_b32 v21, s3
    ds_write2st64_b32 v15, v24, v28 offset0:0 offset1:1
    ds_write_b32 v15, v32 offset:576
    ds_write_b32 v15, v36 offset:832
    ds_write_b32 v20, v21
    s_waitcnt lgkmcnt(0)""")
    STAMP("S")
    A(f"""s_barrier                              ; B2
    buffer_load_dword v89, v89, s[4:7], 0 offen     ; x pair
    global_load_ushort v94, v93, s[22:23]           ; b2""")
    if TOUCH:
        A(f"""global_load_dwordx4 v[24:27], v5, s[42:43] {LD}
        global_load_dwordx4 v[24:27], v5, s[42:43] offset:1024 {LD}
        global_load_dwordx4 v[24:27], v5, s[48:49] {LD}
        global_load_dwordx4 v[24:27], v5, s[48:49] offset:1024 {LD}""")
    A(f"""global_load_dwordx4 v[24:27], v10, s[44:45] {LD}
    global_load_dwordx4 v[24:27], v10, s[44:45] offset:256 {LD}
    global_load_dwordx4 v[24:27], v12, s[52:53] {LD}
    global_load_dwordx2 v[24:25], v88, s[54:55] {LD}""")
    if TLB:
        A("""s_mov_b64 exec, 1
        global_load_dword v24, v93, s[12:13]
        global_load_dword v24, v93, s[24:25]
        s_mov_b64 exec, -1""")
    A(f"""v_mov_b32 v18, s33
    s_mov_b32 s68, 1
    s_mov_b32 s69, 1
    s_mov_b32 s70, 0x000f000f
    s_mov_b32 s71, 0x000f000f
    s_mov_b32 s72, 15
    s_mov_b32 s73, 15
    s_mov_b32 s74, {f32(CEXP)}
    s_mov_b32 s75, 0x0c04000c
    s_mov_b32 s76, 0x04020100
    s_mov_b32 s64, -1
    s_mov_b32 s65, 0x00ffffff
    s_barrier                              ; B3
    s_barrier                              ; B3b
    ds_read_b32 v17, v4
    ds_read_b32 v16, v8
    s_waitcnt lgkmcnt(0)""")
    red32("v17", "v20")
    A("s_mov_b64 exec, s[68:69]")
    lstore("global_store_dwordx4 v9, v[16:19], s[46:47]")
    A("s_mov_b64 exec, -1\nv_mov_b32 v17, s33\nv_mov_b32 v19, s33\ns_barrier                              ; B4")
    STAMP("S")
    sl = [f"global_load_dwordx4 v[{40+4*i}:{43+4*i}], v10, s[44:45] offset:{256*i} {LD}" for i in range(2)]
    poll("L_ps", sl, [42, 46], "-1")
    STAMP("S")
    two = lambda sb: (lambda x: [f"global_load_dwordx4 v[{x+4*i}:{x+3+4*i}], v5, s[{sb}:{sb+1}] offset:{1024*i} {LD}" for i in range(2)])
    twot = lambda x: [x+3, x+7]
    def red_pp(v, t, op):
        A(f"{dpp(op, v, 4)}\n{dpp(op, v, 8)}\nv_mov_b32 {t}, {v}\nv_permlane16_swap_b32 {v}, {t}\nv_{op}_f32 {v}, {v}, {t}\nv_mov_b32 {t}, {v}\nv_permlane32_swap_b32 {v}, {t}\nv_{op}_f32 {v}, {v}, {t}")
    def weights():
        A("v_max_f32 v20, v40, v44")
        red_pp("v20", "v21", "max")
        A("""v_sub_f32 v40, v40, v20
    v_sub_f32 v44, v44, v20
    v_mul_f32 v40, s74, v40
    v_mul_f32 v44, s74, v44
    v_exp_f32 v40, v40
    v_exp_f32 v44, v44
    v_mul_f32 v20, v40, v41
    v_fmac_f32 v20, v44, v45""")
        red_pp("v20", "v21", "add")
        A("v_rcp_f32 v20, v20\nv_mul_f32 v40, v40, v20\nv_mul_f32 v44, v44, v20")
    def f_o(x):
        unpack4(x, 27); unpack4(x+4, 31)
        for i in range(3): A(f"v_mul_f32 v{24+i}, v40, v{x+i}")
        A("v_mul_f32 v27, v40, v27")
        for i in range(3): A(f"v_fmac_f32 v{24+i}, v44, v{x+4+i}")
        A("v_fmac_f32 v27, v44, v31")
    ppoll("L_po", two(42), twot, "-1", f_o, (64, 72), mid=weights)
    def red4():
        A(f"""v_permlane32_swap_b32 v24, v26
        v_permlane32_swap_b32 v25, v27
        v_add_f32 v24, v24, v26
        v_add_f32 v25, v25, v27
        v_permlane16_swap_b32 v24, v25
        v_add_f32 v24, v24, v25
        {dpp('add', 'v24', 8)}
        {dpp('add', 'v24', 4)}""")
    red4()
    A("""v_cvt_pk_bf16_f32 v24, v24, v24
    s_mov_b64 exec, s[70:71]
    ds_write_b16 v13, v24
    s_mov_b64 exec, -1
    s_waitcnt lgkmcnt(0)""")
    STAMP("S")
    A("""s_barrier                              ; B5
    s_cmp_ge_u32 s2, 224
    s_cbranch_scc1 L_send""")
    def f_a(x):
        unpack4(x, 27); unpack4(x+4, 31)
        for i in range(3): A(f"v_add_f32 v{24+i}, v{x+i}, v{x+4+i}")
        A("v_add_f32 v27, v27, v31")
    ppoll("L_pa", two(48), twot, "-1", f_a, (64, 72))
    red4()
    A(f"""v_mov_b32 v16, v24
    v_mov_b32 v18, v24
    v_permlane16_swap_b32 v16, v18
    s_mov_b64 exec, s[72:73]
    global_store_dwordx4 v14, v[16:19], s[50:51] {ST}
    s_mov_b64 exec, -1""")
    STAMP("S")
    ppoll("L_pb", lambda x: [f"global_load_dwordx4 v[{x}:{x+3}], v12, s[52:53] {LD}"], lambda x: [x+1, x+3], "-1",
          lambda x: A(f"v_mov_b32 v24, v{x}\nv_mov_b32 v26, v{x+2}"), (80, 84), mid=lambda: A(f"""    v_lshlrev_b32 v20, 16, v89
    v_and_b32 v21, 0xffff0000, v89
    v_mov_b32 v52, 0
    v_mov_b32 v54, 0
    v_mov_b32 v56, 0
    v_mov_b32 v58, 0
    v_mov_b32 v62, 0
    v_mov_b32 v63, 0
    v_lshlrev_b32 v94, 16, v94
    v_mov_b32 v95, {HOFF}"""))
    A(f"""v_permlane32_swap_b32 v24, v26
    v_add_f32 v24, v24, v26
    v_mov_b32 v26, v24
    v_permlane16_swap_b32 v24, v26
    v_add_f32 v24, v24, v26
    {dpp('add', 'v24', 8)}
    v_mov_b32 v26, v24
    v_permlane32_swap_b32 v24, v26
    v_cvt_pk_bf16_f32 v24, v24, v26
    v_lshlrev_b32 v22, 16, v24
    v_and_b32 v23, 0xffff0000, v24
    v_pk_add_f32 v[20:21], v[20:21], v[22:23]
    v_cvt_pk_bf16_f32 v16, v20, v21
    s_mov_b64 exec, 0xff""")
    lstore("global_store_dwordx2 v88, v[16:17], s[54:55]")
    STAMP("S")
    def f_c(x):
        A("s_mov_b64 exec, s[64:65]")
        for i in range(4): A(f"v_mov_b32 v{52+2*i}, v{x+2*i}")
        A(f"s_mov_b64 exec, -1\nv_mov_b32 v60, v{x+8}")
    ppoll("L_pc2", lambda x: [f"global_load_dwordx4 v[{x}:{x+3}], v5, s[40:41] {LD}", f"global_load_dwordx4 v[{x+4}:{x+7}], v5, s[40:41] offset:896 {LD}",
                              "s_mov_b64 exec, -1", f"global_load_dwordx2 v[{x+8}:{x+9}], v90, s[40:41] {LD}", "s_mov_b64 exec, s[64:65]"],
          lambda x: [x+1, x+3, x+5, x+7, x+9], "s[64:65]", f_c, (40, 66))
    STAMP("S")
    unp = []
    for i, r in enumerate((52, 54, 56, 58, 60)):
        unp += [f"v_lshlrev_b32 v{24+2*i}, 16, v{r}", f"v_and_b32 v{25+2*i}, 0xffff0000, v{r}"]
    unp += ["v_cmp_lt_u32 vcc, 31, v1", "v_mov_b32 v34, v32"]
    ln_stats([52, 54, 56, 58], 448, 36, "s57", fill=unp)
    A("v_cndmask_b32 v34, v34, v33, vcc")
    ln_apply([24, 26, 28, 30, 32], 36, [52, 54, 56, 58, 60])
    ln_stats([52, 54, 56, 58], 448, 62, "s57", fill=["v_lshlrev_b32 v32, 16, v60", "v_and_b32 v33, 0xffff0000, v60"],
             pre="s_mov_b64 exec, s[64:65]", post="s_mov_b64 exec, -1")
    ln_apply([32], 62, [60])
    A("""v_lshlrev_b32 v32, 16, v60
    v_and_b32 v33, 0xffff0000, v60
    s_mov_b64 exec, 1
    ds_write_b64 v95, v[32:33]
    s_mov_b64 exec, s[68:69]
    s_waitcnt lgkmcnt(0)""")
    STAMP("S")
    A("""s_barrier                              ; B6
    s_barrier                              ; B7
    ds_read_b128 v[24:27], v91
    ds_read_b96 v[28:30], v91 offset:16
    s_waitcnt lgkmcnt(0)
    v_add_f32 v24, v24, v25
    v_add_f32 v26, v26, v27
    v_add_f32 v28, v28, v29
    v_add_f32 v24, v24, v26
    v_add_f32 v28, v28, v30
    v_add_f32 v24, v24, v28
    v_cvt_pk_bf16_f32 v24, v24, v24
    v_lshlrev_b32 v24, 16, v24
    v_add_f32 v24, v24, v94
    v_cvt_pk_bf16_f32 v24, v24, v24
    v_lshlrev_b32 v24, 16, v24
    v_add_f32 v24, v24, v34
    v_cvt_pk_bf16_f32 v24, v24, v24
    global_store_short v92, v24, s[24:25]
    s_cmp_lg_u32 s2, 0
    s_cbranch_scc1 L_noep
    s_mov_b64 exec, 1
    global_store_dword v93, v17, s[28:29]
    L_noep:""")
    STAMP("S")
    A("L_send:")
    STAMP_FLUSH("S")
    A("s_endpgm")
    segs, cur = {"e": []}, "e"
    for l in A.L:
        if l.startswith(";;SEG"): cur = l.split()[1]; segs[cur] = []
        else: segs[cur].append(l)
    A.L = segs["e"] + segs["svc"] + segs["kv2"] + ["L_codeend:"]
    body = A.finish()
    return wrap(body, 256, 576, LDS, 108, 102), A.nops

if __name__ == "__main__":
    for name, kw in (("k8_a", dict()), ("k8_k3", dict(WK=3)), ("k8_noack", dict(ACK=0)), ("k8_k3noack", dict(WK=3, ACK=0)), ("k8_p0", dict(NPACE=0)), ("k8_k3p0", dict(WK=3, NPACE=0)), ("k8_k0", dict(WK=0, NPACE=0)), ("k8_k5", dict(WK=5, WV=5))):
        kw.update(SW=6)
        txt, n = gen(**kw); open(name + ".s", "w").write(txt)
        txt, n = gen(stamp=True, **kw); open(name + "_st.s", "w").write(txt)
    print("nops", n, "LDS", LDS)
```

```python
import sys, struct
from asmlib import Asm, wrap, NAME
def f32(x): return "0x%08x" % struct.unpack("<I", struct.pack("<f", x))[0]
KOFF, VOFF = 0, 65536
WOFF = 131072
QOFF = WOFF + 14336
POFF = QOFF + 1152
ZOFF = POFF + 1280
MOFF = ZOFF + 256
FOFF = MOFF + 8
LOFF = MOFF + 16
OOFF = LOFF + 256
HOFF = OOFF + 32
YOFF = HOFF + 16
LDS = YOFF + 64
STATS, HINT, H2C, H2B, QBUF, H1, H2A = 0x1000, 0x3000, 0x4000, 0x8000, 0x10000, 0x50000, 0xD0000
CEXP = 1.4426950408889634 / 16
K0 = -2 * 1.4426950408889634 * 0.7978845608028654
K1 = K0 * 0.044715
KN = NAME + "_kernel"

def gen(stamp=False, ST="sc1", LD="sc1", NT="nt", LOCAL=1, TLB=1, NVA=8, TOUCH=1, BOUND=20000, PRIO=1, NH=0, HOLD=0, GX=4, SW=0, DIAGV=0, WK=4, WV=4, NPACE=2, ACK=1, PIPE=1, DBGWG=None):
    A = Asm()
    nst = {"S": 0, "K": 0}
    slots = {"S": [100, 26, 98, 14] + list(range(78, 98, 2)), "K": [100, 14, 26] + list(range(80, 100, 2))}
    def STAMP(role):
        if not stamp: return
        k = nst[role]; nst[role] += 1
        r = slots[role][k]
        A(f"s_memrealtime s[{r}:{r+1}]")
    def STAMP_FLUSH(role):
        if not stamp: return
        if DBGWG is not None:
            if role != DBGWG[1]: return
            A(f"""s_cmp_lg_u32 s2, {DBGWG[0]}
            s_cbranch_scc1 L_nodbg
            s_load_dwordx2 s[34:35], s[0:1], 88
            s_waitcnt lgkmcnt(0)
            s_mov_b64 exec, 1
            v_mov_b32 v1, 0""")
            for k in range(1, nst[role]):
                A(f"s_sub_u32 s36, s{slots[role][k]}, s{slots[role][0]}\nv_mov_b32 v2, s36\nglobal_store_dword v1, v2, s[34:35] offset:{4*(k-1)}")
            A("L_nodbg:")
            return
        base = 0 if role == "S" else 128
        A(f"""s_waitcnt lgkmcnt(0)
        s_lshl_b32 s34, s2, 8
        s_add_u32 s34, s34, {0x3F000000 + base}
        s_add_u32 s34, s28, s34
        s_addc_u32 s35, s29, 0
        s_mov_b64 exec, 1
        v_mov_b32 v1, 0""")
        for k in range(nst[role]):
            A(f"v_mov_b32 v2, s{slots[role][k]}\nv_mov_b32 v3, s{slots[role][k]+1}\nglobal_store_dwordx2 v1, v[2:3], s[34:35] offset:{8*k}\ns_nop 1")
    def dpp(op, v, r): return f"v_{op}_f32_dpp {v}, {v}, {v} row_ror:{r} row_mask:0xf bank_mask:0xf"
    def red32(v, t, fill=(), op="add"):
        fill = list(fill)
        def gap():
            for _ in range(2):
                if fill: A(fill.pop(0))
        A(f"v_mov_b32 {t}, {v}"); gap()
        A(f"v_permlane16_swap_b32 {v}, {t}\nv_{op}_f32 {v}, {v}, {t}")
        for r in (8, 4, 2, 1):
            gap(); A(dpp(op, v, r))
        for x in fill: A(x)
    def rnd_pair(lo, hi, a, b, tmp):
        A(f"v_cvt_pk_bf16_f32 {tmp}, {a}, {b}\nv_lshlrev_b32 {lo}, 16, {tmp}\nv_and_b32 {hi}, 0xffff0000, {tmp}")
    def ln_stats(pk, n, t, ones, fill=(), pre=None, post=None):
        if pre: A(pre)
        for i, x in enumerate(pk):
            A(f"v_dot2_f32_bf16 v{t}, v{x}, {ones}, {'0' if (i == 0 and not pre) else 'v%d' % t}")
            A(f"v_dot2_f32_bf16 v{t+1}, v{x}, v{x}, {'0' if (i == 0 and not pre) else 'v%d' % (t+1)}")
        if post: A(post)
        fill = list(fill)
        for _ in range(3):
            if fill: A(fill.pop(0))
        A(f"v_permlane32_swap_b32 v{t}, v{t+1}\nv_add_f32 v{t}, v{t}, v{t+1}")
        red32(f"v{t}", f"v{t+1}", fill)
        A(f"""v_mul_f32 v{t}, {f32(1.0/n)}, v{t}
        v_mul_f32 v{t+1}, 1.0, v{t}
        v_permlane32_swap_b32 v{t}, v{t+1}
        v_fma_f32 v{t+1}, -v{t}, v{t}, v{t+1}
        v_max_f32 v{t+1}, 0, v{t+1}
        v_cvt_pk_bf16_f32 v{t+2}, -v{t}, v{t+1}
        v_and_b32 v{t+1}, 0xffff0000, v{t+2}
        v_add_f32 v{t+1}, {f32(1e-5)}, v{t+1}
        v_cvt_pk_bf16_f32 v{t+1}, v{t+1}, v{t+1}
        v_lshlrev_b32 v{t+1}, 16, v{t+1}
        v_sqrt_f32 v{t+1}, v{t+1}
        v_lshlrev_b32 v{t}, 16, v{t+2}
        v_cvt_pk_bf16_f32 v{t+1}, v{t+1}, v{t+1}
        v_lshlrev_b32 v{t+1}, 16, v{t+1}
        v_rcp_f32 v{t+1}, v{t+1}""")
    def ln_apply(pairs, t, outs):
        for a in pairs: A(f"v_pk_add_f32 v[{a}:{a+1}], v[{a}:{a+1}], v[{t}:{t+1}] op_sel_hi:[1,0]")
        for a, o in zip(pairs, outs): A(f"v_cvt_pk_bf16_f32 v{o}, v{a}, v{a+1}")
        for a, o in zip(pairs, outs): A(f"v_lshlrev_b32 v{a}, 16, v{o}\nv_and_b32 v{a+1}, 0xffff0000, v{o}")
        for a in pairs: A(f"v_pk_mul_f32 v[{a}:{a+1}], v[{a}:{a+1}], v[{t}:{t+1}] op_sel:[0,1] op_sel_hi:[1,1]")
        for a, o in zip(pairs, outs): A(f"v_cvt_pk_bf16_f32 v{o}, v{a}, v{a+1}")
    def check(tags, mask, xcc=False):
        if xcc:
            for t in tags: A(f"v_xor_b32 v{t}, s33, v{t}")
            for t in tags: A(f"v_cmpx_gt_u32 vcc, 16, v{t}")
        else:
            for t in tags: A(f"v_cmpx_eq_u32 vcc, s33, v{t}")
        A(f"s_cmp_eq_u64 exec, {mask}\ns_mov_b64 exec, -1")
    def poll(label, loads, tags, mask, xcc=False, entry=None):
        A("s_mov_b32 s77, 0")
        if entry: A(f"s_branch {label}_{entry}")
        A(f"{label}:")
        if mask != "-1": A(f"s_mov_b64 exec, {mask}")
        for l in loads: A(l)
        A(f"s_add_u32 s77, s77, 1\ns_cmp_gt_u32 s77, {BOUND}\ns_cbranch_scc1 {label}_x")
        if entry == "w": A(f"{label}_w:")
        if entry == "w1": A(f"s_waitcnt vmcnt(0)\n{label}_w1:\ns_waitcnt vmcnt(1)")
        else: A("s_waitcnt vmcnt(0)")
        check(tags, mask, xcc)
        A(f"s_cbranch_scc0 {label}\n{label}_x:\ns_mov_b64 exec, -1")
    def ppoll(label, loads, tags, mask, first, bases, mid=None):
        n = sum(1 for l in loads(bases[0]) if l.startswith(("global_", "buffer_")))
        a, b = bases
        def issue(x):
            for l in loads(x): A(l)
        A("s_mov_b32 s77, 0")
        if mask != "-1": A(f"s_mov_b64 exec, {mask}")
        issue(a)
        if mid: mid()
        A(f"{label}:")
        for cur, nxt, nm in ((a, b, "a"), (b, a, "b")):
            issue(nxt)
            A(f"s_waitcnt vmcnt({n})")
            for t in tags(cur): A(f"v_cmpx_eq_u32 vcc, s33, v{t}")
            A(f"s_cmp_eq_u64 exec, {mask}\ns_mov_b64 exec, {mask}")
            if nm == "a": A(f"s_cbranch_scc1 {label}_a")
        A(f"s_cbranch_scc1 {label}_b\ns_add_u32 s77, s77, 1\ns_cmp_gt_u32 s77, {BOUND}\ns_cbranch_scc0 {label}")
        A(f"{label}_b:\ns_mov_b64 exec, -1")
        first(b)
        A(f"s_branch {label}_d\n{label}_a:\ns_mov_b64 exec, -1")
        first(a)
        A(f"{label}_d:")
    fl = [0]
    def lstore(text):
        fl[0] += 1
        if not LOCAL: A(f"{text} {ST}"); return
        A(f"s_cmp_lg_u32 s3, 0\ns_cbranch_scc1 L_pl{fl[0]}\n{text} {ST}\ns_branch L_pd{fl[0]}\nL_pl{fl[0]}:\n{text}\nL_pd{fl[0]}:")
    def ploop(label, vaddr, srd, n, win=0):
        A(f"""{label}:
        {f"s_waitcnt vmcnt({win-1})" if win else ""}
        buffer_load_dwordx4 {vaddr}, {srd}, s35 offen {NT} lds
        s_add_u32 s35, s35, 0x2000
        s_add_u32 m0, m0, 0x2000
        s_cmp_lt_u32 s35, {0x2000*n}
        s_cbranch_scc1 {label}""")
    def pack4(d, v):
        for i in range(3): A(f"v_perm_b32 v{d+i}, v{v+i}, v{v+3}, s{72+i}")
    def unpack4(d, out):
        A(f"v_perm_b32 v{out}, v{d+1}, v{d}, s75\nv_perm_b32 v{out}, v{d+2}, v{out}, s76")

    STAMP("S"); nst["K"] = nst["S"]
    A(f"""v_lshrrev_b32 v2, 6, v0
    s_cmp_ge_u32 s2, 256
    s_cbranch_scc1 L_end
    s_load_dwordx16 s[4:19], s[0:1], 0
    s_load_dwordx8 s[20:27], s[0:1], 64
    s_load_dwordx2 s[28:29], s[0:1], 96
    v_readfirstlane_b32 s32, v2
    v_and_b32 v1, 63, v0
    s_and_b32 s30, s2, 7
    s_lshr_b32 s31, s2, 3
    s_cmp_eq_u32 s32, 0
    s_cbranch_scc0 L_kv
    s_getpc_b64 s[72:73]
    L_pc:
    s_sub_u32 s72, s72, L_pc-{KN}
    s_subb_u32 s73, s73, 0
    v_lshl_add_u32 v6, s31, 3, v1
    v_lshlrev_b32 v6, 6, v6
    v_min_u32 v6, L_codeend-4-{KN}, v6
    s_mov_b64 exec, 0xff
    global_load_dword v96, v6, s[72:73]
    s_mov_b64 exec, -1
    v_lshrrev_b32 v6, 3, v1                ; rr
    v_and_b32 v3, 7, v1                    ; ch
    v_mul_u32_u24 v7, {14*8192}, v6
    v_lshl_add_u32 v7, v3, 4, v7
    s_lshr_b32 s36, s31, 3
    s_mul_i32 s34, s36, {112*8192}
    s_and_b32 s35, s31, 7
    s_lshl_b32 s35, s35, 7
    s_add_u32 s34, s34, s35
    s_lshl_b32 s35, s30, 10
    s_add_u32 s34, s34, s35
    s_mul_i32 s36, s36, 224
    v_mul_u32_u24 v23, 28, v6
    v_add_u32 v23, s36, v23
    v_lshlrev_b32 v5, 4, v1                ; l*16
    s_mov_b32 m0, {WOFF}
    s_mov_b32 s38, {111*8192+128}
    s_mov_b32 s39, 0x20000
    s_mov_b32 s35, 0
    s_waitcnt lgkmcnt(0)
    s_add_u32 s36, s10, s34
    s_addc_u32 s37, s11, 0
    s_mov_b32 s6, 896
    s_mov_b32 s7, 0x20000
    buffer_load_dwordx4 v[16:19], v5, s[4:7], 0 offen
    global_load_dwordx4 v[8:11], v23, s[4:5]
    global_load_dwordx3 v[12:14], v23, s[4:5] offset:16
    L_wl:
    buffer_load_dwordx4 v7, s[36:39], s35 offen {NT} lds
    s_add_u32 s35, s35, 0x2000
    s_add_u32 m0, m0, 0x400
    s_cmp_lt_u32 s35, {14*0x2000}
    s_cbranch_scc1 L_wl
    s_barrier                              ; B0
    s_branch L_svc
    L_kv:
    s_sub_u32 s32, s32, 1
    s_lshl_b32 m0, s32, 10
    v_lshrrev_b32 v2, 5, v1
    v_lshl_add_u32 v2, s32, 1, v2
    v_and_b32 v3, 31, v1                   ; pos
    v_xor_b32 v4, v3, v2
    v_lshlrev_b32 v4, 4, v4
    v_lshl_add_u32 v4, v2, 9, v4
    v_and_b32 v5, 7, v2
    v_lshlrev_b32 v5, 1, v5
    v_xor_b32 v5, v3, v5
    v_lshlrev_b32 v5, 4, v5
    v_lshl_add_u32 v5, v2, 9, v5
    s_lshl_b32 s34, s30, 25
    s_lshl_b32 s35, s31, 16
    s_add_u32 s34, s34, s35
    s_add_u32 s34, s34, 0x1E00000
    s_mov_b32 s38, 0x10000
    s_mov_b32 s39, 0x20000
    s_mov_b32 s42, 0x10000
    s_mov_b32 s43, 0x20000
    s_mov_b32 s35, 0
    s_waitcnt lgkmcnt(0)
    s_load_dword s33, s[28:29], 0
    s_add_u32 s36, s6, s34
    s_addc_u32 s37, s7, 0
    s_add_u32 s40, s8, s34
    s_addc_u32 s41, s9, 0
    s_barrier                              ; B0""")
    ploop("L_kl", "v4", "s[36:39]", 8, WK)
    STAMP("K")
    A("s_branch L_kv2\n;;SEG kv2\nL_kv2:")
    A(f"""v_and_b32 v2, 15, v1                   ; r / j
    v_lshrrev_b32 v3, 4, v1                ; c
    s_lshl_b32 s34, s32, 13
    v_xor_b32 v6, v3, v2
    v_lshlrev_b32 v6, 4, v6
    v_lshl_add_u32 v6, v2, 9, v6
    v_add_u32 v6, s34, v6
    v_xor_b32 v7, 64, v6
    v_xor_b32 v8, 0x80, v6
    v_xor_b32 v9, 0xc0, v6
    v_and_b32 v4, 1, v2                    ; head
    v_mul_u32_u24 v10, 576, v4
    v_lshl_add_u32 v10, v3, 4, v10
    v_add_u32 v10, {QOFF}, v10
    v_lshlrev_b32 v11, 2, v4
    v_add_u32 v11, {MOFF}, v11
    s_lshl_b32 s34, s32, 4
    s_add_u32 s34, s34, {LOFF}
    v_lshlrev_b32 v12, 7, v4
    v_lshl_add_u32 v12, v3, 2, v12
    v_add_u32 v12, s34, v12
    v_lshrrev_b32 v21, 2, v2               ; bank = j>>2
    v_lshlrev_b32 v17, 4, v4
    v_add_u32 v17, v17, v21
    v_lshl_add_u32 v17, s32, 1, v17
    v_lshlrev_b32 v17, 11, v17
    v_lshl_add_u32 v17, v3, 4, v17
    v_lshl_add_u32 v20, s32, 2, v21
    v_lshlrev_b32 v20, 11, v20
    v_lshl_add_u32 v20, v3, 4, v20
    v_and_b32 v4, 3, v2
    v_mul_u32_u24 v13, 320, v4
    v_lshl_add_u32 v13, v3, 4, v13
    v_add_u32 v13, {POFF}, v13
    s_lshr_b32 s34, s32, 1
    s_lshl_b32 s34, s34, 6
    s_and_b32 s72, s32, 1
    s_lshl_b32 s72, s72, 3
    s_add_u32 s34, s34, s72
    v_add_u32 v14, s34, v13
    v_mov_b32 v4, {ZOFF}
    v_cmp_eq_u32 vcc, 1, v21
    v_cndmask_b32 v23, v4, v13, vcc
    v_cmp_eq_u32 vcc, 0, v21
    v_cndmask_b32 v13, v4, v13, vcc
    v_lshlrev_b32 v19, 3, v3
    v_add_u32 v19, {OOFF}, v19
    v_cndmask_b32 v96, v4, v19, vcc
    v_cmp_eq_u32 vcc, 1, v21
    v_cndmask_b32 v97, v4, v19, vcc
    v_cmp_eq_u32 vcc, 2, v21
    v_cndmask_b32 v98, v4, v19, vcc
    v_cmp_eq_u32 vcc, 3, v21
    v_cndmask_b32 v99, v4, v19, vcc
    v_lshrrev_b32 v4, 2, v1                ; key_l = l>>2
    v_and_b32 v21, 7, v4
    v_lshlrev_b32 v21, 1, v21
    v_bfe_u32 v15, v1, 1, 1                ; cc>>1
    v_lshl_add_u32 v15, s32, 2, v15
    v_xor_b32 v15, v15, v21
    v_lshlrev_b32 v15, 4, v15
    v_lshl_add_u32 v15, v4, 9, v15
    v_and_b32 v21, 1, v1
    v_lshl_add_u32 v15, v21, 3, v15
    v_add_u32 v15, {VOFF}, v15
    v_xor_b32 v16, 32, v15                 ; ct1
    s_lshl_b32 s34, s32, 11
    s_add_u32 s62, s34, {WOFF}
    v_and_b32 v21, 3, v1
    v_lshlrev_b32 v19, 7, v4
    v_lshl_add_u32 v19, v21, 3, v19
    v_add_u32 v19, s62, v19
    v_lshrrev_b32 v18, 3, v1
    v_mul_u32_u24 v18, 896, v18
    v_and_b32 v21, 7, v1
    v_lshl_add_u32 v18, v21, 4, v18
    v_lshl_add_u32 v18, s32, 7, v18
    s_lshl_b32 s34, s30, 16
    s_lshl_b32 s72, s31, 6
    s_add_u32 s34, s34, s72
    s_add_u32 s34, s34, {H1}
    s_add_u32 s64, s28, s34
    s_addc_u32 s65, s29, 0
    s_add_u32 s66, s64, {H2A-H1}
    s_addc_u32 s67, s65, 0
    s_lshl_b32 s34, s30, 9
    s_lshl_b32 s72, s31, 4
    s_add_u32 s34, s34, s72
    s_mul_i32 s34, s34, 896
    s_add_u32 s44, s12, s34
    s_addc_u32 s45, s13, 0
    s_mov_b32 s46, 14336
    s_mov_b32 s47, 0x20000
    s_mov_b32 s48, s16
    s_mov_b32 s49, s17
    s_mov_b32 s50, 3584
    s_mov_b32 s51, 0x20000
    s_mov_b32 s52, s18
    s_mov_b32 s53, s19
    s_mov_b32 s54, 3584
    s_mov_b32 s55, 0x20000
    s_mov_b32 s56, s20
    s_mov_b32 s57, s21
    s_mov_b32 s58, 3584
    s_mov_b32 s59, 0x20000
    s_mov_b32 s68, 0x00030003
    s_mov_b32 s69, 0x00030003
    s_mov_b32 s70, 0x000f000f
    s_mov_b32 s71, 0x000f000f
    s_mov_b32 s60, 0xcccccccc
    s_mov_b32 s61, 0xcccccccc
    s_mov_b32 s78, {f32(CEXP)}
    s_mov_b32 s72, 0x07060501
    s_mov_b32 s73, 0x07060502
    s_mov_b32 s74, 0x07060503
    s_movk_i32 s63, {8*896}
    v_subrev_u32 v0, 64, v0                ; kt
    v_lshlrev_b32 v2, 3, v0
    v_mov_b32 v22, {FOFF}
    s_mov_b32 s35, 0
    s_waitcnt lgkmcnt(0)
    s_mul_i32 s33, s33, 0x9E3779B1
    s_add_u32 s33, s33, 0x7F4A7C15
    v_mov_b32 v95, s33""")
    if HOLD == 2: A(f"s_waitcnt vmcnt({GX})\ns_barrier                              ; B1b")
    if HOLD: A("s_barrier")
    STAMP("K")
    if NPACE: ploop("L_vp", "v5", "s[40:43]", min(NPACE, NVA), WV)
    if NPACE < NVA: ploop("L_va", "v5", "s[40:43]", NVA)
    A(f"""buffer_load_dwordx2 v[64:65], v2, s[48:51], 0 offen
    buffer_load_dwordx2 v[66:67], v2, s[52:55], 0 offen
    buffer_load_dwordx2 v[68:69], v2, s[56:59], 0 offen
    s_waitcnt vmcnt({0 if DIAGV else NVA+3})""")
    STAMP("K")
    A("s_barrier")
    STAMP("K")
    A("ds_read_b32 v22, v22")
    QR = [24, 28, 32, 36, 40, 44, 48, 52]; BR = [56, 60, 72, 76, 80, 84, 88, 100]
    for j in range(8):
        A(f"ds_read_b128 v[{QR[j]}:{QR[j]+3}], v{6+(j&3)} offset:{256*(j>>2)}")
        A(f"ds_read_b128 v[{BR[j]}:{BR[j]+3}], v10 offset:{64*j}")
    if stamp: A("s_waitcnt lgkmcnt(0)")
    for j in range(8):
        A(f"s_waitcnt lgkmcnt({14-2*j})")
        if j == 1: A("v_readfirstlane_b32 s3, v22")
        A(f"v_mfma_f32_16x16x32_bf16 v[104:107], v[{QR[j]}:{QR[j]+3}], v[{BR[j]}:{BR[j]+3}], {'0' if j == 0 else 'v[104:107]'}")
    rnd_pair("v88", "v89", "v104", "v105", "v24")
    rnd_pair("v90", "v91", "v106", "v107", "v25")
    A(f"""v_max3_f32 v24, v88, v89, v90
    v_max_f32 v24, v24, v91
    s_mov_b64 exec, s[68:69]
    ds_max_f32 v11, v24
    s_mov_b64 exec, -1
    s_waitcnt lgkmcnt(0)
    s_barrier                              ; B3
    ds_read_b32 v24, v11
    s_waitcnt lgkmcnt(0)""")
    for i in range(4): A(f"v_sub_f32 v{88+i}, v{88+i}, v24")
    for i in range(4): A(f"v_mul_f32 v{88+i}, s78, v{88+i}")
    for i in range(4): A(f"v_exp_f32 v{88+i}, v{88+i}")
    A("v_add_f32 v24, v88, v89\nv_add_f32 v25, v90, v91\nv_add_f32 v24, v24, v25")
    rnd_pair("v26", "v27", "v88", "v89", "v30")
    rnd_pair("v28", "v29", "v90", "v91", "v31")
    for i in range(4): A(f"v_sub_f32 v{26+i}, v{88+i}, v{26+i}")
    for i in range(4): A(f"v_cndmask_b32 v{26+i}, v{88+i}, v{26+i}, s[60:61]")
    A(f"""v_cvt_pk_bf16_f32 v26, v26, v27
    v_cvt_pk_bf16_f32 v27, v28, v29
    s_mov_b64 exec, s[70:71]
    ds_write_b64 v14, v[26:27]
    s_mov_b64 exec, s[68:69]
    ds_write_b32 v12, v24
    s_mov_b64 exec, -1""")
    if NVA < 8: ploop("L_vb", "v5", "s[40:43]", 8)
    A("s_waitcnt lgkmcnt(0)\ns_barrier                              ; B3b")
    STAMP("K")
    P0 = [56, 60, 72, 76]; P1 = [80, 84, 88, 100]
    for t in range(4): A(f"ds_read_b128 v[{P0[t]}:{P0[t]+3}], v13 offset:{64*t}\nds_read_b128 v[{P1[t]}:{P1[t]+3}], v23 offset:{64*t}")
    A(f"""s_mov_b32 s68, 0x00330033
    s_mov_b32 s69, 0x00330033
    s_mov_b32 s70, 0x11111111
    s_mov_b32 s71, 0x11111111
    s_mov_b32 s16, {f32(K1)}
    s_mov_b32 s17, {f32(K1)}
    v_lshrrev_b32 v6, 5, v1
    s_lshl_b32 s34, s32, 2
    s_add_u32 s34, s34, {YOFF}
    v_lshlrev_b32 v7, 5, v6
    v_add_u32 v12, s34, v7
    v_mov_b32 v14, {HOFF}
    s_cmp_eq_u32 s32, 7
    s_cbranch_scc1 L_w7a
    s_mov_b32 m0, s62
    s_nop 0
    buffer_load_dwordx4 v18, s[44:47], 0 offen {NT} lds
    s_add_u32 m0, m0, 0x400
    s_nop 0
    buffer_load_dwordx4 v18, s[44:47], s63 offen {NT} lds
    s_waitcnt vmcnt(2) lgkmcnt(0)
    s_branch L_w7b
    L_w7a:
    s_waitcnt vmcnt(0) lgkmcnt(0)
    L_w7b:""")
    STAMP("K")
    A("s_barrier")
    for t in range(4):
        for ct in range(2):
            for u in range(2):
                r = 24 + 8*t + 4*ct + 2*u
                A(f"ds_read_b64_tr_b16 v[{r}:{r+1}], v{15+ct} offset:{16384*t + 8192*u}")
    if stamp: A("s_waitcnt lgkmcnt(0)")
    for t in range(4):
        for ct in range(2):
            r = 24 + 8*t + 4*ct
            p = (P0, P1)[ct][t]
            A(f"s_waitcnt lgkmcnt({14 - 4*t - 2*ct})")
            A(f"v_mfma_f32_16x16x32_bf16 v[104:107], v[{r}:{r+3}], v[{p}:{p+3}], {'0' if t + ct == 0 else 'v[104:107]'}")
    for i in range(4): A(f"v_add_f32_dpp v{104+i}, v{104+i}, v{104+i} quad_perm:[2,3,0,1] row_mask:0xf bank_mask:0xf")
    pack4(92, 104)
    A("s_mov_b64 exec, s[68:69]")
    lstore("global_store_dwordx4 v17, v[92:95], s[64:65]")
    STAMP("K")
    A("""s_mov_b64 exec, -1
    s_cmp_eq_u32 s32, 7
    s_cbranch_scc1 L_kend
    s_waitcnt vmcnt(1)""")
    for t in range(4): A(f"ds_read_b64_tr_b16 v[{24+2*t}:{25+2*t}], v19 offset:{32*t}")
    A(f"""v_lshlrev_b32 v40, 16, v64
    v_and_b32 v41, 0xffff0000, v64
    v_lshlrev_b32 v42, 16, v65
    v_and_b32 v43, 0xffff0000, v65
    v_lshlrev_b32 v44, 16, v66
    v_and_b32 v45, 0xffff0000, v66
    v_lshlrev_b32 v46, 16, v67
    v_and_b32 v47, 0xffff0000, v67
    v_mov_b32 v48, {f32(K0)}
    v_mov_b32 v49, {f32(K0)}
    v_mov_b32 v50, 1.0
    v_mov_b32 v51, 1.0
    s_waitcnt lgkmcnt(0)
    s_barrier""")
    for t in range(4): A(f"ds_read_b64 v[{32+2*t}:{33+2*t}], v{96+t}")
    if stamp: A("s_waitcnt lgkmcnt(0)")
    for t in range(4):
        A(f"s_waitcnt lgkmcnt({3-t})")
        A(f"v_mfma_f32_16x16x16_bf16 v[104:107], v[{24+2*t}:{25+2*t}], v[{32+2*t}:{33+2*t}], {'0' if t == 0 else 'v[104:107]'}")
    pack4(92, 104)
    A("s_mov_b64 exec, s[70:71]")
    lstore("global_store_dwordx4 v20, v[92:95], s[66:67]")
    A("s_mov_b64 exec, -1")
    STAMP("K")
    A("""s_cmp_ge_u32 s2, 224
    s_cbranch_scc1 L_kend
    s_mov_b32 s68, 1
    s_mov_b32 s69, 1
    s_barrier
    ds_read_b64 v[32:33], v14
    s_waitcnt lgkmcnt(0)""")
    STAMP("K")
    sel = ["op_sel:[0,0] op_sel_hi:[1,0]", "op_sel:[0,1] op_sel_hi:[1,1]"]
    items = [(c, p) for c in range(2) for p in range(2)]
    U = lambda c, p: 72 + 4*c + 2*p
    Z = lambda c, p: 80 + 4*c + 2*p
    for c, p in items: A(f"v_pk_mul_f32 v[{U(c,p)}:{U(c,p)+1}], v[{40+2*p}:{41+2*p}], v[32:33] {sel[c]}")
    for c, p in items: A(f"v_cvt_pk_bf16_f32 v{Z(c,p)}, v{U(c,p)}, v{U(c,p)+1}")
    for c, p in items: A(f"v_lshlrev_b32 v{U(c,p)}, 16, v{Z(c,p)}\nv_and_b32 v{U(c,p)+1}, 0xffff0000, v{Z(c,p)}")
    for c, p in items: A(f"v_pk_add_f32 v[{U(c,p)}:{U(c,p)+1}], v[{U(c,p)}:{U(c,p)+1}], v[{44+2*p}:{45+2*p}]")
    for c, p in items: A(f"v_cvt_pk_bf16_f32 v{Z(c,p)}, v{U(c,p)}, v{U(c,p)+1}")
    for c, p in items: A(f"v_lshlrev_b32 v{U(c,p)}, 16, v{Z(c,p)}\nv_and_b32 v{U(c,p)+1}, 0xffff0000, v{Z(c,p)}")
    for c, p in items: A(f"v_pk_mul_f32 v[{Z(c,p)}:{Z(c,p)+1}], v[{U(c,p)}:{U(c,p)+1}], v[{U(c,p)}:{U(c,p)+1}]")
    for c, p in items: A(f"v_pk_fma_f32 v[{Z(c,p)}:{Z(c,p)+1}], v[{Z(c,p)}:{Z(c,p)+1}], s[16:17], v[48:49]")
    for c, p in items: A(f"v_pk_mul_f32 v[{Z(c,p)}:{Z(c,p)+1}], v[{Z(c,p)}:{Z(c,p)+1}], v[{U(c,p)}:{U(c,p)+1}]")
    for c, p in items: A(f"v_exp_f32 v{Z(c,p)}, v{Z(c,p)}\nv_exp_f32 v{Z(c,p)+1}, v{Z(c,p)+1}")
    for c, p in items: A(f"v_pk_add_f32 v[{Z(c,p)}:{Z(c,p)+1}], v[{Z(c,p)}:{Z(c,p)+1}], v[50:51]")
    for c, p in items: A(f"v_rcp_f32 v{Z(c,p)}, v{Z(c,p)}\nv_rcp_f32 v{Z(c,p)+1}, v{Z(c,p)+1}")
    for c, p in items: A(f"v_pk_mul_f32 v[{Z(c,p)}:{Z(c,p)+1}], v[{Z(c,p)}:{Z(c,p)+1}], v[{U(c,p)}:{U(c,p)+1}]")
    for c, p in items: A(f"v_cvt_pk_bf16_f32 v{Z(c,p)}, v{Z(c,p)}, v{Z(c,p)+1}")
    for c in range(2): A(f"v_dot2_f32_bf16 v{24+c}, v{Z(c,0)}, v68, 0")
    for c in range(2): A(f"v_dot2_f32_bf16 v{24+c}, v{Z(c,1)}, v69, v{24+c}")
    A("v_permlane32_swap_b32 v24, v25\nv_add_f32 v24, v24, v25")
    red32("v24", "v25")
    A("""s_mov_b64 exec, s[68:69]
    ds_write_b32 v12, v24
    s_waitcnt lgkmcnt(0)""")
    STAMP("K")
    A("s_barrier                              ; B7")
    A("L_kend:")
    if stamp:
        A(f"s_cmp_lg_u32 s32, {SW}\ns_cbranch_scc1 L_end")
        STAMP_FLUSH("K")
    A("L_end:\ns_endpgm")

    A(f""";;SEG svc
    L_svc:
    {"s_setprio 3" if PRIO else ""}
    s_load_dword s33, s[28:29], 0
    v_lshlrev_b32 v15, 2, v1
    v_add_u32 v7, {ZOFF}, v15
    v_mov_b32 v20, 0
    ds_write_b32 v7, v20
    s_mov_b64 exec, 1
    v_mov_b32 v7, {MOFF}
    v_mov_b32 v20, 0xff800000
    v_mov_b32 v21, 0xff800000
    ds_write_b64 v7, v[20:21]
    s_mov_b64 exec, -1
    s_lshl_b32 s34, s30, 14
    s_add_u32 s34, s34, {QBUF}
    s_add_u32 s60, s28, s34
    s_addc_u32 s61, s29, 0
    s_mov_b32 s62, 0x24000
    s_mov_b32 s63, 0x20000
    s_lshl_b32 s34, s31, 9
    s_add_u32 s58, s60, s34
    s_addc_u32 s59, s61, 0
    s_lshl_b32 s34, s30, 7
    s_add_u32 s34, s34, {HINT}
    s_add_u32 s40, s28, s34
    s_addc_u32 s41, s29, 0
    v_lshlrev_b32 v7, 7, v1
    s_mov_b64 exec, 15
    global_load_dword v97, v7, s[58:59]
    s_mov_b64 exec, -1
    s_getreg_b32 s56, hwreg(HW_REG_XCC_ID, 0, 4)
    s_mov_b32 s74, 0x05040100
    s_mov_b32 s75, 0x07060302
    s_mov_b32 s57, 0x3f803f80
    v_add_u32 v4, {WOFF}, v5
    v_lshrrev_b32 v2, 4, v1
    v_lshl_add_u32 v2, v3, 2, v2
    v_lshlrev_b32 v2, 4, v2
    s_waitcnt vmcnt(15) lgkmcnt(0)
    s_mul_i32 s33, s33, 0x9E3779B1
    s_add_u32 s33, s33, 0x7F4A7C15""")
    STAMP("S")
    unp = []
    for i in range(7): unp += [f"v_lshlrev_b32 v{24+2*i}, 16, v{8+i}", f"v_and_b32 v{25+2*i}, 0xffff0000, v{8+i}"]
    ln_stats([16, 17, 18, 19], 448, 20, "s57", fill=unp)
    ln_apply([24+2*i for i in range(7)], 20, [8+i for i in range(7)])
    A("s_xor_b32 s34, s33, s56\nv_mov_b32 v17, s34\nv_mov_b32 v19, s34\ns_mov_b32 s68, 0x00ff00ff\ns_mov_b32 s69, 0x00ff00ff")
    for i in range(7):
        A(f"s_waitcnt vmcnt({13-2*i})")
        A(f"ds_read_b128 v[{40+8*i}:{43+8*i}], v4 offset:{2048*i}\nds_read_b128 v[{44+8*i}:{47+8*i}], v4 offset:{2048*i+1024}")
        if i == 0: continue
        A("s_waitcnt lgkmcnt(0)" if stamp else "s_waitcnt lgkmcnt(2)")
        for jj in ([i-1] if i < 6 else [5, 6]):
            if jj == 6: A("s_waitcnt lgkmcnt(0)")
            a_, b_ = 40+8*jj, 44+8*jj
            for k in range(4):
                A(f"v_perm_b32 v{32+2*k}, v{b_+k}, v{a_+k}, s74\nv_perm_b32 v{33+2*k}, v{b_+k}, v{a_+k}, s75")
            for k in range(8):
                A(f"v_dot2_f32_bf16 v{24+k}, v{32+k}, v{8+jj}, {'0' if jj == 0 else 'v%d' % (24+k)}")
    for k in range(4): A(f"v_permlane32_swap_b32 v{24+k}, v{28+k}")
    for k in range(4): A(f"v_add_f32 v{24+k}, v{24+k}, v{28+k}")
    for k in range(2): A(f"v_permlane16_swap_b32 v{24+k}, v{26+k}")
    A(f"""v_add_f32 v16, v24, v26
    v_add_f32 v18, v25, v27
    {dpp('add', 'v16', 8)}
    {dpp('add', 'v18', 8)}
    s_mov_b64 exec, s[68:69]
    global_store_dwordx4 v2, v[16:19], s[58:59]
    s_mov_b64 exec, -1
    v_add_u32 v2, 0x20000, v2""")
    STAMP("S")
    A(f"""    s_lshl_b32 s34, s30, 5
    s_add_u32 s34, s34, s31
    s_lshl_b32 s35, s34, 11
    s_add_u32 s35, s35, {H1}
    s_add_u32 s42, s28, s35
    s_addc_u32 s43, s29, 0                 ; H1 inbox
    s_add_u32 s48, s42, {H2A-H1}
    s_addc_u32 s49, s43, 0                 ; H2A inbox
    s_lshl_b32 s34, s30, 10
    s_add_u32 s34, s34, {STATS}
    s_add_u32 s46, s28, s34
    s_addc_u32 s47, s29, 0
    s_lshr_b32 s34, s31, 4
    s_lshl_b32 s34, s34, 9
    s_add_u32 s44, s46, s34
    s_addc_u32 s45, s47, 0
    s_lshl_b32 s35, s31, 7
    s_add_u32 s35, s35, {H2B}
    s_add_u32 s52, s28, s35
    s_addc_u32 s53, s29, 0
    s_lshl_b32 s34, s30, 12
    s_add_u32 s50, s52, s34
    s_addc_u32 s51, s53, 0                 ; H2B out
    s_lshl_b32 s34, s30, 11
    s_add_u32 s34, s34, {H2C}
    s_add_u32 s40, s28, s34
    s_addc_u32 s41, s29, 0
    s_lshl_b32 s35, s31, 6
    s_add_u32 s54, s40, s35
    s_addc_u32 s55, s41, 0                 ; H2C out
    v_add_u32 v4, {LOFF}, v15
    v_lshrrev_b32 v7, 5, v1                ; half
    v_lshlrev_b32 v8, 2, v7
    v_add_u32 v8, {MOFF}, v8
    s_lshl_b32 s34, s31, 4
    v_lshl_add_u32 v9, v7, 9, s34
    v_lshrrev_b32 v10, 2, v1
    v_lshlrev_b32 v10, 4, v10
    v_and_b32 v11, 3, v1                   ; gq
    v_lshrrev_b32 v13, 4, v1
    v_lshl_add_u32 v13, v11, 2, v13
    v_lshlrev_b32 v13, 1, v13
    v_add_u32 v13, {OOFF}, v13
    v_lshl_add_u32 v14, v11, 1, v7
    v_lshlrev_b32 v14, 4, v14
    v_lshlrev_b32 v12, 4, v3
    v_lshl_add_u32 v12, v6, 12, v12
    v_lshlrev_b32 v88, 3, v3
    s_lshl_b32 s34, s31, 5
    v_lshl_add_u32 v89, v3, 2, s34
    s_lshl_b32 s34, s2, 3
    v_mov_b32 v90, s34
    v_lshlrev_b32 v91, 5, v7
    v_add_u32 v91, {YOFF}, v91
    s_lshl_b32 s34, s2, 2
    v_lshl_add_u32 v92, v7, 1, s34
    v_add_u32 v15, {QOFF}, v15
    v_mov_b32 v93, 0

    s_mov_b32 s67, 0
    s_movk_i32 s64, 0x1000
    s_movk_i32 s65, 0x2000
    s_movk_i32 s66, 0x3000""")
    if ACK: A("s_waitcnt vmcnt(0)")
    STAMP("S")
    qloads = [f"buffer_load_dwordx4 v[{24+4*i}:{27+4*i}], v5, s[60:63], {['s67','s64','s65','s66'][i>>2]} offen offset:{1024*(i&3)} {LD}" for i in range(16)]
    for l in qloads: A(l)
    A(f"s_mov_b64 exec, s[68:69]\nglobal_store_dwordx4 v2, v[16:19], s[58:59] {ST}\ns_mov_b64 exec, -1")
    STAMP("S")
    A("""""")
    sw = ["s_cmp_eq_u32 s77, 1", "s_cbranch_scc0 L_nsw", "s_add_u32 s67, s67, 0x20000", "s_add_u32 s64, s64, 0x20000", "s_add_u32 s65, s65, 0x20000", "s_add_u32 s66, s66, 0x20000", "L_nsw:"]
    poll("L_pq", sw + qloads, [25+2*i for i in range(32)], "-1", xcc=True, entry="w1")
    for i in range(0, 32, 2): A(f"v_cmpx_eq_u32 vcc, s56, v{25+2*i}")
    A("s_cmp_eq_u64 exec, -1\ns_cselect_b32 s3, 1, 0\ns_mov_b64 exec, -1")
    for j in range(4):
        for h in range(2):
            r = 24 + 4*j + 2*h
            A(f"v_add_f32 v{r}, v{r}, v{r+16}\nv_add_f32 v{r+32}, v{r+32}, v{r+48}\nv_add_f32 v{r}, v{r}, v{r+32}")
        A(f"v_cvt_pk_bf16_f32 v{24+4*j}, v{24+4*j}, v{26+4*j}")
    A(f"""v_mov_b32 v20, {FOFF}
    v_mov_b32 v21, s3
    ds_write2st64_b32 v15, v24, v28 offset0:0 offset1:1
    ds_write_b32 v15, v32 offset:576
    ds_write_b32 v15, v36 offset:832
    ds_write_b32 v20, v21
    s_waitcnt lgkmcnt(0)""")
    STAMP("S")
    A(f"""s_barrier                              ; B2
    buffer_load_dword v89, v89, s[4:7], 0 offen     ; x pair
    global_load_ushort v94, v93, s[22:23]           ; b2""")
    if TOUCH:
        A(f"""global_load_dwordx4 v[24:27], v5, s[42:43] {LD}
        global_load_dwordx4 v[24:27], v5, s[42:43] offset:1024 {LD}
        global_load_dwordx4 v[24:27], v5, s[48:49] {LD}
        global_load_dwordx4 v[24:27], v5, s[48:49] offset:1024 {LD}""")
    A(f"""global_load_dwordx4 v[24:27], v10, s[44:45] {LD}
    global_load_dwordx4 v[24:27], v10, s[44:45] offset:256 {LD}
    global_load_dwordx4 v[24:27], v12, s[52:53] {LD}
    global_load_dwordx2 v[24:25], v88, s[54:55] {LD}""")
    if TLB:
        A("""s_mov_b64 exec, 1
        global_load_dword v24, v93, s[12:13]
        global_load_dword v24, v93, s[24:25]
        s_mov_b64 exec, -1""")
    A(f"""v_mov_b32 v18, s33
    s_mov_b32 s68, 1
    s_mov_b32 s69, 1
    s_mov_b32 s70, 0x000f000f
    s_mov_b32 s71, 0x000f000f
    s_mov_b32 s72, 15
    s_mov_b32 s73, 15
    s_mov_b32 s74, {f32(CEXP)}
    s_mov_b32 s75, 0x0c04000c
    s_mov_b32 s76, 0x04020100
    s_mov_b32 s64, -1
    s_mov_b32 s65, 0x00ffffff
    s_barrier                              ; B3
    s_barrier                              ; B3b
    ds_read_b32 v17, v4
    ds_read_b32 v16, v8
    s_waitcnt lgkmcnt(0)""")
    red32("v17", "v20")
    A("s_mov_b64 exec, s[68:69]")
    lstore("global_store_dwordx4 v9, v[16:19], s[46:47]")
    A("s_mov_b64 exec, -1\nv_mov_b32 v17, s33\nv_mov_b32 v19, s33\ns_barrier                              ; B4")
    STAMP("S")
    sl = [f"global_load_dwordx4 v[{40+4*i}:{43+4*i}], v10, s[44:45] offset:{256*i} {LD}" for i in range(2)]
    poll("L_ps", sl, [42, 46], "-1")
    STAMP("S")
    two = lambda sb: (lambda x: [f"global_load_dwordx4 v[{x+4*i}:{x+3+4*i}], v5, s[{sb}:{sb+1}] offset:{1024*i} {LD}" for i in range(2)])
    twot = lambda x: [x+3, x+7]
    def red_pp(v, t, op):
        A(f"{dpp(op, v, 4)}\n{dpp(op, v, 8)}\nv_mov_b32 {t}, {v}\nv_permlane16_swap_b32 {v}, {t}\nv_{op}_f32 {v}, {v}, {t}\nv_mov_b32 {t}, {v}\nv_permlane32_swap_b32 {v}, {t}\nv_{op}_f32 {v}, {v}, {t}")
    def weights():
        A("v_max_f32 v20, v40, v44")
        red_pp("v20", "v21", "max")
        A("""v_sub_f32 v40, v40, v20
    v_sub_f32 v44, v44, v20
    v_mul_f32 v40, s74, v40
    v_mul_f32 v44, s74, v44
    v_exp_f32 v40, v40
    v_exp_f32 v44, v44
    v_mul_f32 v20, v40, v41
    v_fmac_f32 v20, v44, v45""")
        red_pp("v20", "v21", "add")
        A("v_rcp_f32 v20, v20\nv_mul_f32 v40, v40, v20\nv_mul_f32 v44, v44, v20")
    def f_o(x):
        unpack4(x, 27); unpack4(x+4, 31)
        for i in range(3): A(f"v_mul_f32 v{24+i}, v40, v{x+i}")
        A("v_mul_f32 v27, v40, v27")
        for i in range(3): A(f"v_fmac_f32 v{24+i}, v44, v{x+4+i}")
        A("v_fmac_f32 v27, v44, v31")
    ppoll("L_po", two(42), twot, "-1", f_o, (64, 72), mid=weights)
    def red4():
        A(f"""v_permlane32_swap_b32 v24, v26
        v_permlane32_swap_b32 v25, v27
        v_add_f32 v24, v24, v26
        v_add_f32 v25, v25, v27
        v_permlane16_swap_b32 v24, v25
        v_add_f32 v24, v24, v25
        {dpp('add', 'v24', 8)}
        {dpp('add', 'v24', 4)}""")
    red4()
    A("""v_cvt_pk_bf16_f32 v24, v24, v24
    s_mov_b64 exec, s[70:71]
    ds_write_b16 v13, v24
    s_mov_b64 exec, -1
    s_waitcnt lgkmcnt(0)""")
    STAMP("S")
    A("""s_barrier                              ; B5
    s_cmp_ge_u32 s2, 224
    s_cbranch_scc1 L_send""")
    def f_a(x):
        unpack4(x, 27); unpack4(x+4, 31)
        for i in range(3): A(f"v_add_f32 v{24+i}, v{x+i}, v{x+4+i}")
        A("v_add_f32 v27, v27, v31")
    ppoll("L_pa", two(48), twot, "-1", f_a, (64, 72))
    red4()
    A(f"""v_mov_b32 v16, v24
    v_mov_b32 v18, v24
    v_permlane16_swap_b32 v16, v18
    s_mov_b64 exec, s[72:73]
    global_store_dwordx4 v14, v[16:19], s[50:51] {ST}
    s_mov_b64 exec, -1""")
    STAMP("S")
    ppoll("L_pb", lambda x: [f"global_load_dwordx4 v[{x}:{x+3}], v12, s[52:53] {LD}"], lambda x: [x+1, x+3], "-1",
          lambda x: A(f"v_mov_b32 v24, v{x}\nv_mov_b32 v26, v{x+2}"), (80, 84), mid=lambda: A(f"""    v_lshlrev_b32 v20, 16, v89
    v_and_b32 v21, 0xffff0000, v89
    v_mov_b32 v52, 0
    v_mov_b32 v54, 0
    v_mov_b32 v56, 0
    v_mov_b32 v58, 0
    v_mov_b32 v62, 0
    v_mov_b32 v63, 0
    v_lshlrev_b32 v94, 16, v94
    v_mov_b32 v95, {HOFF}"""))
    A(f"""v_permlane32_swap_b32 v24, v26
    v_add_f32 v24, v24, v26
    v_mov_b32 v26, v24
    v_permlane16_swap_b32 v24, v26
    v_add_f32 v24, v24, v26
    {dpp('add', 'v24', 8)}
    v_mov_b32 v26, v24
    v_permlane32_swap_b32 v24, v26
    v_cvt_pk_bf16_f32 v24, v24, v26
    v_lshlrev_b32 v22, 16, v24
    v_and_b32 v23, 0xffff0000, v24
    v_pk_add_f32 v[20:21], v[20:21], v[22:23]
    v_cvt_pk_bf16_f32 v16, v20, v21
    s_mov_b64 exec, 0xff""")
    lstore("global_store_dwordx2 v88, v[16:17], s[54:55]")
    STAMP("S")
    def f_c(x):
        A("s_mov_b64 exec, s[64:65]")
        for i in range(4): A(f"v_mov_b32 v{52+2*i}, v{x+2*i}")
        A(f"s_mov_b64 exec, -1\nv_mov_b32 v60, v{x+8}")
    ppoll("L_pc2", lambda x: [f"global_load_dwordx4 v[{x}:{x+3}], v5, s[40:41] {LD}", f"global_load_dwordx4 v[{x+4}:{x+7}], v5, s[40:41] offset:896 {LD}",
                              "s_mov_b64 exec, -1", f"global_load_dwordx2 v[{x+8}:{x+9}], v90, s[40:41] {LD}", "s_mov_b64 exec, s[64:65]"],
          lambda x: [x+1, x+3, x+5, x+7, x+9], "s[64:65]", f_c, (40, 66))
    STAMP("S")
    unp = []
    for i, r in enumerate((52, 54, 56, 58, 60)):
        unp += [f"v_lshlrev_b32 v{24+2*i}, 16, v{r}", f"v_and_b32 v{25+2*i}, 0xffff0000, v{r}"]
    unp += ["v_cmp_lt_u32 vcc, 31, v1", "v_mov_b32 v34, v32"]
    ln_stats([52, 54, 56, 58], 448, 36, "s57", fill=unp)
    A("v_cndmask_b32 v34, v34, v33, vcc")
    ln_apply([24, 26, 28, 30, 32], 36, [52, 54, 56, 58, 60])
    ln_stats([52, 54, 56, 58], 448, 62, "s57", fill=["v_lshlrev_b32 v32, 16, v60", "v_and_b32 v33, 0xffff0000, v60"],
             pre="s_mov_b64 exec, s[64:65]", post="s_mov_b64 exec, -1")
    ln_apply([32], 62, [60])
    A("""v_lshlrev_b32 v32, 16, v60
    v_and_b32 v33, 0xffff0000, v60
    s_mov_b64 exec, 1
    ds_write_b64 v95, v[32:33]
    s_mov_b64 exec, s[68:69]
    s_waitcnt lgkmcnt(0)""")
    STAMP("S")
    A("""s_barrier                              ; B6
    s_barrier                              ; B7
    ds_read_b128 v[24:27], v91
    ds_read_b96 v[28:30], v91 offset:16
    s_waitcnt lgkmcnt(0)
    v_add_f32 v24, v24, v25
    v_add_f32 v26, v26, v27
    v_add_f32 v28, v28, v29
    v_add_f32 v24, v24, v26
    v_add_f32 v28, v28, v30
    v_add_f32 v24, v24, v28
    v_cvt_pk_bf16_f32 v24, v24, v24
    v_lshlrev_b32 v24, 16, v24
    v_add_f32 v24, v24, v94
    v_cvt_pk_bf16_f32 v24, v24, v24
    v_lshlrev_b32 v24, 16, v24
    v_add_f32 v24, v24, v34
    v_cvt_pk_bf16_f32 v24, v24, v24
    global_store_short v92, v24, s[24:25]
    s_cmp_lg_u32 s2, 0
    s_cbranch_scc1 L_noep
    s_mov_b64 exec, 1
    global_store_dword v93, v17, s[28:29]
    L_noep:""")
    STAMP("S")
    A("L_send:")
    STAMP_FLUSH("S")
    A("s_endpgm")
    segs, cur = {"e": []}, "e"
    for l in A.L:
        if l.startswith(";;SEG"): cur = l.split()[1]; segs[cur] = []
        else: segs[cur].append(l)
    A.L = segs["e"] + segs["svc"] + segs["kv2"] + ["L_codeend:"]
    body = A.finish()
    return wrap(body, 256, 576, LDS, 108, 102), A.nops

if __name__ == "__main__":
    for name, kw in (("k8_dS7", dict(DBGWG=(7, "S"))), ("k8_dS100", dict(DBGWG=(100, "S"))), ("k8_dK7", dict(DBGWG=(7, "K"), SW=6)), ("k8_dS0", dict(DBGWG=(0, "S")))):
        txt, n = gen(stamp=True, **kw); open(name + ".s", "w").write(txt)
    txt, n = gen(); open("k8_a.s", "w").write(txt)
    print("nops", n, "LDS", LDS)
```
